```python
import torch

def _softmax(x, axis=-1):
    return torch.softmax(x, dim=axis)

def _gelu(x):
    return torch.nn.functional.gelu(x, approximate='tanh')

def _silu(x):
    return torch.nn.functional.silu(x)

def _sigmoid(x):
    return torch.sigmoid(x)

def _layernorm(x, axis=-1, eps=1e-05):
    m = x.mean(dim=axis, keepdim=True)
    v = x.var(dim=axis, keepdim=True, unbiased=False)
    return (x - m) / torch.sqrt(v + eps)

def _scatter_add(tgt, idx, src, axis=0):
    return tgt.clone().index_add_(axis, idx, src)

def _segment_sum(src, seg, n):
    out = torch.zeros((n,) + src.shape[1:], dtype=src.dtype)
    return out.index_add_(0, seg, src)

def _pad(x, pw):
    flat = tuple((v for pair in reversed(pw) for v in pair))
    return torch.nn.functional.pad(x, flat)
kernel_name = 'adaLN_cond__gqa_block_cached__glu_gated_glu__prompt'

def setup_inputs():

    _w = lambda a: (lambda t: t.to(torch.bfloat16) if t.is_floating_point() else t)(torch.as_tensor(a))

    def _A_setup():
        B, Sq, D = (1, 2048, 1024)
        Hq, Hkv, Sk, Dh = (32, 4, 2048, 128)
        assert Hq % Hkv == 0, (Hq, Hkv)
        return {'x': _w((lambda *s: torch.randn(*s, dtype=torch.bfloat16) * 0.05)(B, Sq, D)), 'k_cache': _w((lambda *s: torch.randn(*s, dtype=torch.bfloat16) * 3.2)(B, Hkv, Sk, Dh)), 'v_cache': _w((lambda *s: torch.randn(*s, dtype=torch.bfloat16) * 0.4)(B, Hkv, Sk, Dh)), 'wq': _w((lambda *s: torch.randn(*s, dtype=torch.bfloat16) * 3.2)(D, Hq * Dh) * D ** (-0.5)), 'wo': _w((lambda *s: torch.randn(*s, dtype=torch.bfloat16) * 0.4)(Hq * Dh, D) * (Hq * Dh) ** (-0.5))}
    _A_in = _A_setup()

    def _B_setup():
        B, S, D, F = (1, 2048, 1024, 3584)
        return {'x': _w((lambda *s: torch.randn(*s, dtype=torch.bfloat16) * 0.05)(B, S, D)), 'w_gate': _w((lambda *s: torch.randn(*s, dtype=torch.bfloat16) * 0.05)(D, F)), 'w_up': _w((lambda *s: torch.randn(*s, dtype=torch.bfloat16) * 0.05)(D, F)), 'w_down': _w((lambda *s: torch.randn(*s, dtype=torch.bfloat16) * 0.05)(F, D))}
    _B_in = _B_setup()
    return {'A_x': _A_in['x'], 'A_k_cache': _A_in['k_cache'], 'A_v_cache': _A_in['v_cache'], 'A_wq': _A_in['wq'], 'A_wo': _A_in['wo'], 'B_x': _B_in['x'], 'B_w_gate': _B_in['w_gate'], 'B_w_up': _B_in['w_up'], 'B_w_down': _B_in['w_down'], 'c': _w((lambda *s: torch.randn(*s, dtype=torch.bfloat16) * 0.1)(1, 1024) * 8.0), 'w_mod': _w((lambda *s: torch.randn(*s, dtype=torch.bfloat16) * 0.1)(1024, 6 * 1024) * 1024 ** (-0.5) * 8.0)}

def reference(A_x, A_k_cache, A_v_cache, A_wq, A_wo, B_x, B_w_gate, B_w_up, B_w_down, c, w_mod):

    def _A_ref(x, k_cache, v_cache, wq, wo):
        B, Sq, D = x.shape
        Hq, Dh = (32, 128)
        Hkv = k_cache.shape[1]
        rep = Hq // Hkv
        q = (lambda x, *d: x.permute(*d))((x @ wq).reshape(B, Sq, Hq, Dh), 0, 2, 1, 3)
        k = (lambda x, n, axis: torch.repeat_interleave(x, n, dim=axis))(k_cache, rep, axis=1)
        v = (lambda x, n, axis: torch.repeat_interleave(x, n, dim=axis))(v_cache, rep, axis=1)
        scores = torch.einsum('bhqd,bhkd->bhqk', q, k) * Dh ** (-0.5)
        p = _softmax(scores, axis=-1)
        o = torch.einsum('bhqk,bhkd->bhqd', p, v)
        return (lambda x, *d: x.permute(*d))(o, 0, 2, 1, 3).reshape(B, Sq, Hq * Dh) @ wo

    def _B_ref(x, w_gate, w_up, w_down):
        g = torch.einsum('bsd,df->bsf', x, w_gate)
        u = torch.einsum('bsd,df->bsf', x, w_up)
        h = _sigmoid(g) * u
        return torch.einsum('bsf,fd->bsd', h, w_down)
    x = A_x
    mod = (_silu(c) @ w_mod).reshape(c.shape[0], 6, 1, -1)
    sa, ca, ga, sb, cb, gb = (mod[:, 0].clone(), mod[:, 1].clone(), mod[:, 2].clone(), mod[:, 3].clone(), mod[:, 4].clone(), mod[:, 5].clone())
    h = _layernorm(x, axis=-1) * (1 + ca) + sa
    x = x + ga * _A_ref(h, A_k_cache, A_v_cache, A_wq, A_wo)
    h = _layernorm(x, axis=-1) * (1 + cb) + sb
    x = x + gb * _B_ref(h, B_w_gate, B_w_up, B_w_down)
    return x
```

```python
import re

class Asm:
    def __init__(self):
        self.lines = []
    def __call__(self, s):
        for l in s.split("\n"):
            l = l.strip()
            if l: self.lines.append(l)
    def label(self, name): self.lines.append(name + ":")
    def text(self): return "\n".join(("" if l.endswith(":") or l.startswith(".") else "    ") + l for l in self.lines)

def vr(base, n=1, f="v"):
    return f"{f}{base}" if n == 1 else f"{f}[{base}:{base+n-1}]"
def ar(base, n=1): return vr(base, n, "a")
def sr(base, n=1): return vr(base, n, "s")

_reg = re.compile(r"^(-|\|)?(abs\()?([vas])(\d+|\[(\d+):(\d+)\])\)?\|?$")
def regs_of(tok):
    tok = tok.strip()
    if tok in ("vcc",): return [("s", 106), ("s", 107)]
    if tok == "exec": return [("s", 126), ("s", 127)]
    if tok == "m0": return [("s", 124)]
    if tok == "vcc_lo": return [("s",106)]
    if tok == "vcc_hi": return [("s",107)]
    m = _reg.match(tok)
    if not m: return []
    f = m.group(3)
    if m.group(5) is not None:
        return [(f, i) for i in range(int(m.group(5)), int(m.group(6)) + 1)]
    return [(f, int(m.group(4)))]

TRANS = ("v_exp_f32", "v_log_f32", "v_rcp_f32", "v_rsq_f32", "v_sqrt_f32", "v_sin_f32", "v_cos_f32")
class Ins:
    __slots__ = ("text", "op", "dst", "src", "kind", "tags", "ws", "ops")
def parse(line):
    text = line
    tags = {}
    if ";" in line:
        line, c = line.split(";", 1)
        for m in re.finditer(r"@(\w+)(?:=([\w,.-]+))?", c):
            tags.setdefault(m.group(1), []).append(m.group(2))
    line = line.strip()
    if not line or line.endswith(":") or line.startswith("."): return None
    parts = line.split(None, 1)
    op = parts[0]
    rest = parts[1] if len(parts) > 1 else ""
    ops = [o.strip() for o in rest.split(",")] if rest else []
    if ops:
        last = ops[-1].split()
        ops[-1] = last[0] if last else ""
        mods = last[1:]
    else: mods = []
    I = Ins(); I.text = text; I.op = op; I.tags = tags; I.ws = 1; I.ops = ops
    R = [regs_of(o) for o in ops]
    dst, src = [], []
    base = op.replace("_e32", "").replace("_e64", "")
    if op == "s_nop":
        I.kind = "nop"; I.ws = int(ops[0], 0) + 1
    elif op.startswith("v_mfma"):
        I.kind = "mfma"; dst = R[0]; src = R[1] + R[2] + R[3]
    elif op.startswith("ds_read") or op.startswith("ds_bpermute") or op.startswith("ds_swizzle"):
        I.kind = "ds"; dst = R[0]; src = sum(R[1:], [])
    elif op.startswith("ds_write"):
        I.kind = "ds"; src = sum(R, [])
    elif op.startswith("buffer_load") or op.startswith("global_load"):
        I.kind = "vm"
        if "lds" in mods:
            src = sum(R, []) + [("s", 124)]
        else:
            dst = R[0]; src = sum(R[1:], [])
    elif op.startswith("buffer_store") or op.startswith("global_store") or op.startswith("buffer_atomic") or op.startswith("global_atomic"):
        I.kind = "vm"; src = sum(R, [])
    elif op.startswith("buffer_wbl2") or op.startswith("buffer_inv"):
        I.kind = "vm"
    elif op.startswith("s_load") or op in ("s_memtime", "s_memrealtime"):
        I.kind = "smem"; dst = R[0]; src = sum(R[1:], [])
    elif op.startswith("s_waitcnt"):
        I.kind = "wait"
    elif op in ("s_barrier",):
        I.kind = "barrier"
    elif op.startswith("s_cbranch") or op in ("s_branch", "s_endpgm", "s_call_b64", "s_setpc_b64", "s_swappc_b64"):
        I.kind = "branch"
        if op in ("s_call_b64",): dst = R[0]
    elif op.startswith("s_cmp") or op.startswith("s_bitcmp"):
        I.kind = "salu"; src = sum(R, [])
    elif op.startswith("s_"):
        I.kind = "salu"; dst = R[0] if R else []; src = sum(R[1:], [])
        if "saveexec" in op: dst = dst + [("s",126),("s",127)]
    elif op.startswith("v_cmp"):
        I.kind = "valu"; dst = R[0]; src = sum(R[1:], [])
    elif base.startswith("v_permlane") and "swap" in base:
        I.kind = "valu"; dst = R[0] + R[1]; src = R[0] + R[1]
    elif base in ("v_fmac_f32", "v_pk_fmac_f16"):
        I.kind = "valu"; dst = R[0]; src = R[0] + sum(R[1:], [])
    elif base in ("v_add_co_u32", "v_sub_co_u32"):
        I.kind = "valu"; dst = R[0] + R[1]; src = sum(R[2:], [])
    elif base in ("v_addc_co_u32",):
        I.kind = "valu"; dst = R[0] + R[1]; src = sum(R[2:], [])
    elif base.startswith("v_cndmask") and len(ops) == 3:
        I.kind = "valu"; dst = R[0]; src = R[1] + R[2] + [("s",106),("s",107)]
    elif op.startswith("v_"):
        I.kind = "valu"; dst = R[0]; src = sum(R[1:], [])
    else:
        raise ValueError("unknown op: " + text)
    I.dst = dst; I.src = src
    return I

def mfma_passes(op):
    if "16x16x32" in op or "16x16x16" in op: return 4
    if "32x32x16" in op or "32x32x8" in op: return 8
    raise ValueError(op)

def check(lines, name="", verbose=True, lds_model=True):
    ins = [I for I in (parse(l) for l in lines) if I is not None]
    errs = []
    def err(i, msg): errs.append(f"[{name}] #{i} {ins[i].text.strip()}  :: {msg}")
    pos = []; p = 0
    for I in ins:
        pos.append(p); p += I.ws
    last_w = {}
    last_mfma_c = {}
    lg, vm = [], []
    pending = {}
    dma_state = {}
    rd_out = {}
    for i, I in enumerate(ins):
        def dist(j): return pos[i] - pos[j] - ins[j].ws
        for r in I.src + I.dst:
            if r in pending:
                isload_dst = (r in I.dst and I.kind in ("ds", "vm") and r not in I.src)
                err(i, f"touches {r} with outstanding load #{pending[r][1]} ({ins[pending[r][1]].text.strip()})")
        for r in set(I.src):
            if r in last_w:
                j, k = last_w[r]; J = ins[j]; d = dist(j)
                if k == "mfma":
                    ps = mfma_passes(J.op)
                    if I.kind == "mfma":
                        cregs = regs_of(I.ops[3])
                        if r in cregs:
                            if cregs == J.dst and mfma_passes(I.op) == ps: need = 0
                            else: need = {4: 6, 8: 10}[ps]
                        else: need = {4: 8, 8: 12}[ps]
                        if r in cregs and r in (regs_of(I.ops[1]) + regs_of(I.ops[2])): need = {4: 8, 8: 12}[ps]
                    else: need = {4: 8, 8: 12}[ps]
                    if d < need: err(i, f"MFMA->{I.kind} RAW on {r}: {d} < {need} (producer #{j} {J.text.strip()})")
                elif k == "valu":
                    need = 0
                    if I.kind == "mfma": need = 2
                    elif J.op.replace("_e32","").replace("_e64","") in TRANS and I.kind == "valu": need = 1
                    if "permlane" in I.op: need = max(need, 2)
                    if I.op.startswith("v_readfirstlane") or I.op.startswith("v_readlane"): need = max(need, 1)
                    if r[0] == "s":
                        if I.kind == "vm": need = max(need, 5)
                        elif I.kind == "valu": need = max(need, 2)
                        elif I.kind in ("salu","branch"): need = max(need, 0)
                    if J.op.replace("_e32","").replace("_e64","") in TRANS and I.kind in ("vm", "ds"): need = max(need, 1)
                    if d < need: err(i, f"VALU->{I.kind} RAW on {r}: {d} < {need} (producer #{j} {J.text.strip()})")
                elif k == "salu":
                    if r == ("s", 124) and I.kind == "vm" and d < 1: err(i, "M0 write -> LDS DMA needs 1 wait state")
        for r in set(I.dst):
            if r in last_w:
                j, k = last_w[r]; J = ins[j]; d = dist(j)
                if k == "mfma" and I.kind != "mfma":
                    need = {4: 8, 8: 12}[mfma_passes(J.op)]
                    if d < need: err(i, f"MFMA->{I.kind} WAW on {r}: {d} < {need} (producer #{j})")
                if k == "mfma" and I.kind == "mfma" and I.dst != J.dst:
                    need = {4: 6, 8: 10}[mfma_passes(J.op)]
                    if d < need: err(i, f"MFMA->MFMA partial WAW on {r}: {d} < {need}")
            if I.kind == "valu" and r in last_mfma_c:
                j = last_mfma_c[r]; d = dist(j); need = {4: 3, 8: 7}[mfma_passes(ins[j].op)]
                if d < need: err(i, f"MFMA srcC WAR on {r}: {d} < {need} (reader #{j})")
            if I.kind == "valu" and ("st", r) in last_w:
                j = last_w[("st", r)][0]; d = dist(j)
                if d < 2: err(i, f"wide store data WAR on {r}: {d} < 2")
        if I.kind == "wait":
            t = I.text.split(";")[0]
            m = re.search(r"lgkmcnt\((\d+)\)", t)
            if m:
                n = int(m.group(1))
                while len(lg) > n:
                    e = lg.pop(0)
                    for r in e[1]:
                        if pending.get(r, (None, None))[1] == e[0]: del pending[r]
                    for reg in e[2]:
                        rd_out.setdefault(reg, {})[e[0]] = "done"
            m = re.search(r"vmcnt\((\d+)\)", t)
            if m:
                n = int(m.group(1))
                while len(vm) > n:
                    e = vm.pop(0)
                    for r in e[1]:
                        if pending.get(r, (None, None))[1] == e[0]: del pending[r]
                    for reg in e[2]:
                        if dma_state.get(reg, (None,None))[1] == e[0]: dma_state[reg] = ("landed", e[0])
        elif I.kind == "barrier":
            for reg, (st, j) in list(dma_state.items()):
                if st == "landed": dma_state[reg] = ("visible", j)
            for reg, d_ in rd_out.items():
                for k_, st in list(d_.items()):
                    if st == "done": d_[k_] = "barriered"
        elif I.kind == "ds":
            rtags = [t for t in I.tags.get("rd", [])]
            for reg in rtags:
                st = dma_state.get(reg)
                priv = "priv" in I.tags
                if lds_model:
                    if st is None: err(i, f"LDS read of region {reg} never loaded")
                    elif st[0] == "issued": err(i, f"LDS read of region {reg} while DMA in flight")
                    elif st[0] == "landed" and not priv: err(i, f"LDS read of region {reg} without barrier after DMA landed")
                rd_out.setdefault(reg, {})[i] = "inflight"
            lg.append((i, I.dst, rtags))
            if len(lg) > 64: err(i, "too many lgkm outstanding?")
            for r in I.dst: pending[r] = ("lg", i)
        elif I.kind == "smem":
            lg.append((i, I.dst, []))
            for r in I.dst: pending[r] = ("lg", i)
        elif I.kind == "vm":
            dtags = [t for t in I.tags.get("dma", [])]
            priv = "priv" in I.tags
            for reg in dtags:
                if lds_model:
                    for k_, st in rd_out.get(reg, {}).items():
                        if st == "inflight" or (st == "done" and not priv):
                            err(i, f"DMA into region {reg} while read #{k_} is {st} (WAR)")
                rd_out[reg] = {}
                dma_state[reg] = ("issued", i)
            vm.append((i, I.dst if not I.op.startswith(("buffer_store","global_store")) else [], dtags))
            if len(vm) > 63: err(i, f"vmcnt overflow ({len(vm)} outstanding)")
            for r in I.dst: pending[r] = ("vm", i)
            if I.op.startswith(("buffer_store", "global_store")) and ("x4" in I.op or "x3" in I.op):
                for r in regs_of(I.ops[0]) if I.op.startswith("buffer") else regs_of(I.ops[1]): last_w[("st", r)] = (i, "st")
        for r in I.dst:
            if I.kind in ("mfma", "valu", "salu"): last_w[r] = (i, I.kind)
            elif r in last_w: del last_w[r]
        if I.kind == "mfma":
            for r in regs_of(I.ops[3]): last_mfma_c[r] = i
    if verbose:
        for e in errs[:6]: print(e[:300])
        if len(errs) > 6: print(f"... {len(errs)} errors total")
    return errs
```

```python
import sys
from common import *
HDR = open("cdna_kernels/%s.s.ref" % NAME).read()
HDR = HDR[:HDR.index("; Override launch geometry")]
def assemble(kernels):
    out = [HDR.rstrip()]
    for k in kernels:
        out.append(f"; @launch kernel={k['name']} grid=({k['grid']},1,1) block=({k['block']},1,1) lds={k['lds']}")
    out.append('.amdgcn_target "amdgcn-amd-amdhsa--gfx950"\n.text')
    seen = set()
    for k in kernels:
        if k['name'] in seen: continue
        seen.add(k['name']); out.append(k['asm'].text())
    out.append('.section .rodata,"a"')
    seen = set()
    for k in kernels:
        if k['name'] in seen: continue
        seen.add(k['name']); out.append(kernel_desc(k['name'], k['vgprs'], k['accum'], k.get('sgprs', 102)))
    return "\n".join(out) + "\n"
```

```python
from asmlib import *
NAME = "adaLN_cond__gqa_block_cached__glu_gated_glu__prompt"
KA = dict(x=0, k=8, v=16, wq=24, wo=32, bx=40, wg=48, wu=56, wd=64, c=72, wmod=80, out=88, dbg=96, ws=104)
WS_MODP = 0x0
WS_MOD  = 0x20000
WS_H1F  = 0x100000
WS_KV   = 0x500000
WS_OF   = 0x1000000
WS_X2   = 0x2000000
WS_H2F  = 0x2400000
WS_HHF  = 0x2800000
WS_EX   = 0x4000000
WS_OP   = 0x5000000
WS_FLAG = 0x5800000
LOG2E = 1.4426950408889634

def f32bits(x):
    import struct
    return struct.unpack("<I", struct.pack("<f", x))[0]

def srd(a, s, base_pair, off, size):
    if off:
        a(f"s_add_u32 s{s}, s{base_pair}, {hex(off)}")
        a(f"s_addc_u32 s{s+1}, s{base_pair+1}, 0")
    else:
        a(f"s_mov_b32 s{s}, s{base_pair}")
        a(f"s_mov_b32 s{s+1}, s{base_pair+1}")
    a(f"s_mov_b32 s{s+2}, {hex(size)}")
    a(f"s_mov_b32 s{s+3}, 0x20000")

def kernel_header(name):
    return f".globl {name}\n.p2align 8\n.type {name},@function\n{name}:"

def kernel_desc(name, vgprs, accum, sgprs=102):
    return f""".p2align 6
.amdhsa_kernel {name}
  .amdhsa_next_free_vgpr {vgprs}
  .amdhsa_next_free_sgpr {sgprs}
  .amdhsa_accum_offset {accum}
  .amdhsa_group_segment_fixed_size 0
  .amdhsa_kernarg_size 112
  .amdhsa_user_sgpr_count 2
  .amdhsa_user_sgpr_kernarg_segment_ptr 1
  .amdhsa_system_sgpr_workgroup_id_x 1
.end_amdhsa_kernel"""

def interleave(a, mfmas, gaps, pre=None):
    for i, m in enumerate(mfmas):
        if pre and pre.get(i):
            for x in pre[i]: a(x)
        a(m if m is not None else "s_nop 0")
        for x in gaps[i]: a(x)

WS_STAMP = 0x3800000
sSTAMP = 60
def stamp(emit, i):
    emit(f"s_memtime s[{sSTAMP+4*i}:{sSTAMP+4*i+1}]")
    emit(f"s_memrealtime s[{sSTAMP+4*i+2}:{sSTAMP+4*i+3}]")
    emit("s_waitcnt lgkmcnt(0)")
def stamp_store(emit, n, ws_pair, vtmp=200, kidx=0):
    emit(f"s_add_u32 s96, s{ws_pair}, {hex(WS_STAMP + kidx*65536)}"); emit(f"s_addc_u32 s97, s{ws_pair+1}, 0")
    emit("s_mov_b32 s98, 0x100000"); emit("s_mov_b32 s99, 0x20000")
    emit(f"s_lshl_b32 s95, s2, 6")
    for i in range(n):
        emit(f"v_mov_b32 v{vtmp+2*i}, s{sSTAMP+4*i}"); emit(f"v_mov_b32 v{vtmp+2*i+1}, s{sSTAMP+4*i+2}")
    emit(f"v_mov_b32 v{vtmp+2*n}, 0")
    for i in range(n):
        emit(f"buffer_store_dwordx2 v[{vtmp+2*i}:{vtmp+2*i+1}], v{vtmp+2*n}, s[96:99], s95 offen offset:{8*i}")

import os
STF = os.environ.get("STF", "")
PREFETCH = os.environ.get("PF", "1") == "1"
```

```python
from common import *

vLANE16 = 1; vCUR = 2; vNXT = 3; vW = 4; vB = 5
vA = 9
QF = 20
S = 84
P = 116
E = 148
NM = 156
LT = 172
LR = 176
TMP = 180
ACC = 84
O = 0
BR = 128
AF = 192
VF = 224
sWS = 4; sWQ = 6
SRD_W = 8; SRD_H = 12; SRD_KV = 16; SRD_O = 20
sWAVE = 24; sHEAD = 25; sQB = 26; sKVH = 27
sWOFF = 28; sWOFF2 = 29; sWM0 = 30; sBOFF = 31; sCNT = 32
sKO = 33; sVO = 34; sMN = 35; sMC = 36; sTH = 37; sTMP = 38
sRET = 40
SRD_PF = 44
sPFA = 42; sPFB = 43
vPF = 17; vPFD = 212
OFFSET = 24.0
THRESH = 2.0**60
WBASE = 65536
CFG = dict(vgaps=[0, 3, 6, 8, 11, 13, 15, 19], kgaps=[33, 35, 38, 41, 43, 47, 51, 54],
           dgaps=[[5, 17, 23, 27], [5, 17, 23, 27], [37, 45, 53, 59], [37, 45, 53, 59]])

def mf(d, a_, b, c): return f"v_mfma_f32_16x16x32_bf16 {d}, {a_}, {b}, {c}"

class VmSim:
    def __init__(self): self.q = []
    def issue(self, tag): self.q.append(tag)
    def wait_for(self, tag):
        idx = max(i for i, t in enumerate(self.q) if t == tag)
        n = len(self.q) - 1 - idx
        self.q = self.q[idx+1:]
        return n

def kv_group(kind, tag, cur, lo):
    sm = sMC if cur else sMN
    so = sKO if kind == "K" else sVO
    ldsoff = (0 if kind == "K" else 32768) + (0 if lo else 4096)
    setup = [f"s_add_u32 m0, s{sm}, {ldsoff}"]
    if not lo: setup.append(f"s_add_u32 s{sTMP}, s{so}, 4096")
    r = so if lo else sTMP
    dm = [f"buffer_load_dwordx4 v{vLANE16}, s[{SRD_KV}:{SRD_KV+3}], s{r} offen offset:{i*1024} lds ; @dma={tag}" for i in range(4)]
    post = [] if lo else [f"s_add_u32 s{so}, s{so}, 32768"]
    return setup, dm, post

def qproj_step(s, nsteps=32, D=6, DB=3):
    mfm, gaps, pre = [], [[] for _ in range(32)], {}
    bslot = s % 4
    for ft in range(8):
        for tb in range(4):
            d = vr(ACC + 16*ft + 4*tb, 4)
            mfm.append(mf(d, ar(AF + 4*ft, 4), ar(BR + 16*bslot + 4*tb, 4), d if s > 0 else "0"))
    def ard(ft, st, half):
        off = (st % 8) * 8192 + half * 1024
        return f"ds_read_b64_tr_b16 {ar(AF + 4*ft + 2*half, 2)}, v{vA+ft} offset:{off} ; @rd=W{st}"
    gaps[0].append(ard(7, s, 0)); gaps[1].append(ard(7, s, 1))
    if s + 1 < nsteps:
        for ft in range(7):
            gaps[4*ft + 4].append(ard(ft, s + 1, 0)); gaps[4*ft + 5].append(ard(ft, s + 1, 1))
    if s + D < nsteps:
        sl = (s + D) % 8
        gaps[2].append(f"s_add_u32 m0, s{sWM0}, {sl*8192}")
        gaps[3].append(f"buffer_load_dwordx4 v{vW}, s[{SRD_W}:{SRD_W+3}], s{sWOFF} offen lds ; @dma=W{s+D}")
        gaps[6].append(f"s_add_u32 s{sWOFF2}, s{sWOFF}, {4*8192}")
        gaps[10].append(f"s_add_u32 m0, s{sWM0}, {sl*8192 + 1024}")
        gaps[11].append(f"buffer_load_dwordx4 v{vW}, s[{SRD_W}:{SRD_W+3}], s{sWOFF2} offen lds ; @dma=W{s+D}")
        gaps[14].append(f"s_add_u32 s{sWOFF}, s{sWOFF}, {32*8192}")
    if s + DB < nsteps:
        bs = (s + DB) % 4
        for tb in range(4):
            gaps[15 + 4*tb].append(f"buffer_load_dwordx4 {ar(BR + 16*bs + 4*tb, 4)}, v{vB+tb}, s[{SRD_H}:{SRD_H+3}], s{sBOFF} offen ; @b=B{s+DB}")
        gaps[30].append(f"s_add_u32 s{sBOFF}, s{sBOFF}, 1024")
    if 26 <= s <= 29:
        kind, lo = [("K", True), ("K", False), ("V", True), ("V", False)][s - 26]
        su, dm, po = kv_group(kind, f"{kind}0{'lo' if lo else 'hi'}", True, lo)
        gaps[2] += su
        for g, x in zip((3, 7, 11, 14), dm): gaps[g].append(x)
        gaps[18] += po
    return mfm, gaps

def sm_stream(par):
    it = []
    for qb in range(4):
        g0 = 22 + 16*qb
        Pq = P + 16*par + 4*qb
        for i in range(8):
            it.append((g0 + 2*i, f"v_exp_f32 v{E+i}, v{S + 8*qb + i}"))
        o = lambda i: g0 + 2*i + 1
        it.append((o(1), f"v_add_f32 v{LT+qb}, v{E}, v{E+1}"))
        it.append((o(1), f"v_cvt_pk_bf16_f32 v{Pq}, v{E}, v{E+1}"))
        for i in range(2, 8):
            it.append((o(i), f"v_add_f32 v{LT+qb}, v{LT+qb}, v{E+i}"))
            if i in (3, 5): it.append((o(i), f"v_cvt_pk_bf16_f32 v{Pq + i//2}, v{E+i-1}, v{E+i}"))
        it.append((o(7), f"v_cmp_lt_f32 vcc, s{sTH}, v{LT+qb}"))
        it.append((o(8), ("BR", qb, par)))
        it.append((o(8), f"v_cvt_pk_bf16_f32 v{Pq+3}, v{E+6}, v{E+7}"))
        it.append((o(8), f"v_add_f32 v{LR+qb}, v{LR+qb}, v{LT+qb}"))
    return it

def slow_path(name, qb, par):
    a = Asm()
    Sq = S + 8*qb; Pq = P + 16*par + 4*qb; t0, t1, dl, f = TMP, TMP+1, TMP+2, TMP+3; X = TMP + 4
    a.label(f"L_{name}_slow_{qb}_{par}")
    a("s_nop 7"); a("s_nop 3")
    a(f"v_max3_f32 v{t0}, v{Sq}, v{Sq+1}, v{Sq+2}"); a(f"v_max3_f32 v{t0}, v{t0}, v{Sq+3}, v{Sq+4}")
    a(f"v_max3_f32 v{t0}, v{t0}, v{Sq+5}, v{Sq+6}"); a(f"v_max_f32 v{t0}, v{t0}, v{Sq+7}")
    a(f"v_mov_b32 v{t1}, v{t0}"); a("s_nop 1"); a(f"v_permlane16_swap_b32 v{t0}, v{t1}"); a(f"v_max_f32 v{t0}, v{t0}, v{t1}")
    a(f"v_mov_b32 v{t1}, v{t0}"); a("s_nop 1"); a(f"v_permlane32_swap_b32 v{t0}, v{t1}"); a(f"v_max_f32 v{t0}, v{t0}, v{t1}")
    a(f"v_ceil_f32 v{dl}, v{t0}"); a(f"v_add_f32 v{dl}, {hex(f32bits(OFFSET))}, v{dl}"); a(f"v_max_f32 v{dl}, 0, v{dl}")
    a(f"v_cvt_i32_f32 v{t1}, v{dl}"); a(f"v_sub_u32 v{t1}, 0, v{t1}"); a(f"v_ldexp_f32 v{f}, 1.0, v{t1}")
    for i in range(8): a(f"v_sub_f32 v{Sq+i}, v{Sq+i}, v{dl}")
    for i in range(4): a(f"v_sub_f32 v{NM+4*qb+i}, v{NM+4*qb+i}, v{dl}")
    a(f"v_mul_f32 v{LR+qb}, v{LR+qb}, v{f}")
    for i in range(32):
        a(f"v_accvgpr_read_b32 v{t0}, a{O+32*qb+i}"); a(f"v_mul_f32 v{t0}, v{t0}, v{f}"); a(f"v_accvgpr_write_b32 a{O+32*qb+i}, v{t0}")
    for i in range(6): a(f"v_exp_f32 v{X+i}, v{Sq+i}")
    a(f"v_exp_f32 v{E+6}, v{Sq+6}"); a(f"v_exp_f32 v{E+7}, v{Sq+7}")
    a(f"v_add_f32 v{LT+qb}, v{X}, v{X+1}")
    for i in range(2, 6): a(f"v_add_f32 v{LT+qb}, v{LT+qb}, v{X+i}")
    a(f"v_add_f32 v{LT+qb}, v{LT+qb}, v{E+6}"); a(f"v_add_f32 v{LT+qb}, v{LT+qb}, v{E+7}")
    for j in range(3): a(f"v_cvt_pk_bf16_f32 v{Pq+j}, v{X+2*j}, v{X+2*j+1}")
    a("s_nop 1")
    a(f"s_setpc_b64 s[{sRET}:{sRET+1}]")
    return a

def attn_iter(name, t, u, last_body, uid, cfg=CFG):
    do_qk = t < 63
    mfm = []
    for qb in range(4):
        for kb in range(2):
            for s in range(4):
                if not do_qk: mfm.append(None); continue
                d = vr(S + 8*qb + 4*kb, 4)
                mfm.append(mf(d, ar(AF + 16*kb + 4*s, 4), vr(QF + 16*qb + 4*s, 4), vr(NM + 4*qb, 4) if s == 0 else d))
    par = t % 2
    for qb in range(4):
        for db in range(8):
            d = ar(O + 32*qb + 4*db, 4)
            mfm.append(mf(d, ar(VF + 4*db, 4), vr(P + 16*par + 4*qb, 4), d))
    A_, V_ = [[] for _ in range(64)], [[] for _ in range(64)]
    items = [(g - 64, x) for g, x in sm_stream(t % 2) if g >= 64]
    if t + 1 <= 63: items += [(g, x) for g, x in sm_stream((t + 1) % 2) if g < 64]
    for g, x in items:
        if isinstance(x, tuple):
            _, qb, pr = x
            lab = f"L_{name}_c{uid}_{g}"
            A_[g].append(f"s_cbranch_vccz {lab}")
            A_[g].append(f"s_call_b64 s[{sRET}:{sRET+1}], L_{name}_slow_{qb}_{pr} ; @cold")
            A_[g].append(f"{lab}:")
        else: V_[g].append(x)
    stg = (t + 1) // 4; pos = (t + 1) % 4
    base = vNXT if u == 3 else vCUR
    for i, g in enumerate(cfg["vgaps"]):
        A_[g].append(f"ds_read_b128 {ar(VF + 4*i, 4)}, v{base} offset:{32768 + pos*8192 + i*1024}")
    if u == 2:
        A_[31].append("s_waitcnt vmcnt(0) lgkmcnt(0)"); A_[31].append("s_barrier")
    else:
        A_[31].append("s_waitcnt lgkmcnt(0)")
    if t + 2 <= 63:
        stg = (t + 2) // 4; pos = (t + 2) % 4
        base = vCUR if u < 2 else vNXT
        for i, g in enumerate(cfg["kgaps"]):
            A_[g].append(f"ds_read_b128 {ar(AF + 4*i, 4)}, v{base} offset:{pos*8192 + i*1024}")
        A_[63].append("s_waitcnt lgkmcnt(0)")
    i_body = t // 4
    grp = None
    if u == 0: grp = ("V", f"V{i_body+1}lo", False, True)
    elif u == 1: grp = ("V", f"V{i_body+1}hi", False, False)
    elif u == 2 and not last_body: grp = ("K", f"K{i_body+2}lo", True, True)
    elif u == 3 and not last_body: grp = ("K", f"K{i_body+2}hi", True, False)
    if grp:
        su, dm, po = kv_group(*grp)
        dg = cfg["dgaps"][u]
        A_[dg[0] - 1] += su
        for g, x in zip(dg, dm): A_[g].append(x)
        A_[dg[3] + 1] += po
    gaps = [A_[g] + V_[g] for g in range(64)]
    return mfm, gaps

def gen_attn(name="attn_kernel", cfg=CFG, stamps=False):
    a = Asm(); lin = []
    def both(x):
        n = len(a.lines); a(x); lin.extend(a.lines[n:])
    a(kernel_header(name))
    both("s_cmp_ge_u32 s2, 256"); both(f"s_cbranch_scc1 L_{name}_end")
    both(f"s_load_dwordx2 s[{sWS}:{sWS+1}], s[0:1], {KA['ws']}")
    both(f"s_load_dwordx2 s[{sWQ}:{sWQ+1}], s[0:1], {KA['wq']}")
    if PREFETCH:
        for i, k in enumerate(("wo", "wg", "wu", "wd")): both(f"s_load_dwordx2 s[{SRD_PF+4*i}:{SRD_PF+4*i+1}], s[0:1], {KA[k]}")
    if stamps: stamp(both, 0)
    both("v_lshrrev_b32 v4, 6, v0")
    both("v_and_b32 v0, 63, v0")
    both(f"v_readfirstlane_b32 s{sWAVE}, v4")
    both("s_and_b32 s38, s2, 7"); both("s_lshr_b32 s39, s2, 3")
    both(f"s_lshr_b32 s{sKVH}, s38, 1")
    both("s_and_b32 s38, s38, 1"); both("s_lshl_b32 s38, s38, 2")
    both(f"s_lshr_b32 s{sQB}, s39, 3"); both(f"s_add_u32 s{sQB}, s{sQB}, s38")
    both("s_and_b32 s39, s39, 7"); both(f"s_lshl_b32 s{sHEAD}, s{sKVH}, 3"); both(f"s_add_u32 s{sHEAD}, s{sHEAD}, s39")
    both("s_waitcnt lgkmcnt(0)")
    h = Asm()
    srd(h, SRD_W, sWQ, 0, 1024*4096*2); srd(h, SRD_H, sWS, WS_H1F, 4 << 20)
    srd(h, SRD_KV, sWS, WS_KV, 4 << 20); srd(h, SRD_O, sWS, WS_OF, 16 << 20)
    for l in h.lines: both(l)
    both(f"v_lshlrev_b32 v{vLANE16}, 4, v0")
    both(f"v_mov_b32 v{vCUR}, v{vLANE16}")
    both(f"v_add_u32 v{vNXT}, 0x10000, v{vLANE16}")
    both("v_lshrrev_b32 v9, 4, v0")
    both(f"s_and_b32 s38, s{sWAVE}, 1"); both("s_lshl_b32 s38, s38, 2")
    both("v_or_b32 v10, s38, v9")
    both("v_bfe_u32 v11, v0, 1, 3")
    both("v_xor_b32 v10, v10, v11")
    both("v_lshlrev_b32 v10, 5, v10")
    both("v_and_b32 v11, 1, v0"); both("v_lshlrev_b32 v11, 4, v11")
    both("v_lshl_add_u32 v10, v9, 13, v10"); both("v_add_u32 v10, v10, v11")
    both(f"s_lshl_b32 s38, s{sHEAD}, 8")
    both(f"v_add_u32 v{vW}, s38, v10")
    both(f"s_lshl_b32 s38, s{sQB}, 4"); both(f"s_lshl_b32 s39, s{sWAVE}, 2"); both("s_add_u32 s38, s38, s39"); both("s_lshl_b32 s38, s38, 15")
    both(f"v_add_u32 v{vB}, s38, v{vLANE16}")
    for tb in range(1, 4): both(f"v_add_u32 v{vB+tb}, 0x8000, v{vB+tb-1}")
    both("v_lshrrev_b32 v17, 4, v0")
    both("v_bfe_u32 v18, v0, 2, 2")
    both("v_lshl_add_u32 v19, v17, 3, v18")
    both("v_lshlrev_b32 v19, 8, v19")
    both("v_and_b32 v20, 3, v0"); both("v_lshl_add_u32 v19, v20, 3, v19")
    both(f"v_add_u32 v19, {hex(WBASE)}, v19")
    both("v_and_b32 v17, 1, v17"); both("v_lshl_or_b32 v18, v17, 2, v18")
    for ft in range(8):
        both(f"v_xor_b32 v20, {ft}, v18"); both(f"v_lshl_add_u32 v{vA+ft}, v20, 5, v19")
    both(f"s_lshl_b32 s{sWOFF}, s{sWAVE}, 16")
    both(f"s_lshl_b32 s{sWM0}, s{sWAVE}, 11"); both(f"s_add_u32 s{sWM0}, s{sWM0}, {hex(WBASE)}")
    both(f"s_mov_b32 s{sBOFF}, 0")
    both(f"s_lshl_b32 s38, s{sKVH}, 19"); both(f"s_lshl_b32 s39, s{sWAVE}, 13")
    both(f"s_add_u32 s{sKO}, s38, s39")
    both(f"s_add_u32 s{sVO}, s{sKO}, {hex((2 << 20) - 8192)}")
    both(f"s_mov_b32 s{sMC}, s39"); both(f"s_add_u32 s{sMN}, s39, 0x10000")
    both(f"s_mov_b32 s{sTH}, {hex(f32bits(THRESH))}")
    if PREFETCH:
        both(f"s_lshl_b32 s38, s2, 2"); both(f"s_add_u32 s38, s38, s{sWAVE}")
        both(f"s_lshl_b32 s{sPFA}, s38, 9"); both(f"s_mul_i32 s{sPFB}, s38, 448")
        for i in range(4):
            both(f"s_mov_b32 s{SRD_PF+4*i+2}, {(8 << 20) if i == 0 else 1024*7168}"); both(f"s_mov_b32 s{SRD_PF+4*i+3}, 0x20000")
    vm = VmSim()
    for st in range(6):
        sl = st % 8
        both(f"s_add_u32 m0, s{sWM0}, {sl*8192}"); both(f"s_add_u32 s{sWOFF2}, s{sWOFF}, {4*8192}")
        both(f"buffer_load_dwordx4 v{vW}, s[{SRD_W}:{SRD_W+3}], s{sWOFF} offen lds ; @dma=W{st}"); vm.issue(f"W{st}")
        both(f"s_add_u32 m0, s{sWM0}, {sl*8192+1024}"); both(f"s_add_u32 s{sWOFF}, s{sWOFF}, {32*8192}")
        both(f"buffer_load_dwordx4 v{vW}, s[{SRD_W}:{SRD_W+3}], s{sWOFF2} offen lds ; @dma=W{st}"); vm.issue(f"W{st}")
        if st >= 3:
            for tb in range(4):
                both(f"buffer_load_dwordx4 {ar(BR + 16*((st-3)%4) + 4*tb, 4)}, v{vB+tb}, s[{SRD_H}:{SRD_H+3}], s{sBOFF} offen"); vm.issue(f"B{st-3}")
            both(f"s_add_u32 s{sBOFF}, s{sBOFF}, 1024")
    for i in range(128): both(f"v_accvgpr_write_b32 a{i}, 0")
    both(f"s_waitcnt vmcnt({vm.wait_for('B0')})")
    both("s_barrier")
    if stamps: stamp(both, 1)
    for ft in range(7):
        for hh in range(2):
            both(f"ds_read_b64_tr_b16 {ar(AF + 4*ft + 2*hh, 2)}, v{vA+ft} offset:{hh*1024} ; @rd=W0")
    def qstep(s):
        mfm, gaps = qproj_step(s)
        out = Asm(); pre = {}
        if s > 0:
            out(f"s_waitcnt vmcnt({vm.wait_for(f'B{s}')})")
            if s % 2 == 1: out("s_barrier")
        for ft in range(8):
            n = 12
            if s == 31: n = ((6 - ft) * 2 + (2 if ft >= 1 else 0)) if ft <= 6 else 0
            pre[4*ft] = [f"s_waitcnt lgkmcnt({n})"]
        interleave(out, mfm, gaps, pre)
        for l in out.lines:
            I = parse(l)
            if I is not None and I.kind == "vm": vm.issue((I.tags.get("dma") or I.tags.get("b"))[0])
        return out.lines
    bodies = [sum((qstep(s) for s in range(8*b, 8*b + 8)), []) for b in range(4)]
    strip = lambda L: [re.sub(r"\s*;.*", "", l) for l in L]
    assert strip(bodies[1]) == strip(bodies[2]), "Q loop body not uniform"
    for l in bodies[0]: a(l)
    a(f"s_mov_b32 s{sCNT}, 2")
    a(".p2align 4"); a.label(f"L_{name}_q")
    for l in bodies[1]: a(l)
    a(f"s_sub_u32 s{sCNT}, s{sCNT}, 1"); a(f"s_cmp_lg_u32 s{sCNT}, 0"); a(f"s_cbranch_scc1 L_{name}_q")
    for l in bodies[3]: a(l)
    lin += bodies[0] + bodies[1] + bodies[2] + bodies[3]
    if stamps: stamp(both, 2)
    both("s_nop 7")
    for qb in range(4):
        for s in range(4):
            for hh in range(2):
                src = ACC + 16*(2*s + hh) + 4*qb
                both(f"v_cvt_pk_bf16_f32 v{QF + 16*qb + 4*s + 2*hh}, v{src}, v{src+1}")
                both(f"v_cvt_pk_bf16_f32 v{QF + 16*qb + 4*s + 2*hh + 1}, v{src+2}, v{src+3}")
    both("s_waitcnt vmcnt(0)")
    both("s_barrier")
    for lo in (True, False):
        su, dm, po = kv_group("K", f"K1{'lo' if lo else 'hi'}", False, lo)
        for x in su: both(x)
        both("s_nop 0")
        for x in dm + po: both(x)
    if PREFETCH: both(f"v_lshlrev_b32 v{vPF}, 3, v0")
    for i in range(8): both(f"ds_read_b128 {ar(AF + 4*i, 4)}, v{vCUR} offset:{i*1024}")
    both("s_waitcnt lgkmcnt(0)")
    for qb in range(4):
        for kb in range(2):
            for s in range(4):
                d = vr(S + 8*qb + 4*kb, 4)
                both(mf(d, ar(AF + 16*kb + 4*s, 4), vr(QF + 16*qb + 4*s, 4), "0" if s == 0 else d))
    for i in range(8): both(f"ds_read_b128 {ar(AF + 4*i, 4)}, v{vCUR} offset:{8192 + i*1024}")
    both("s_nop 7")
    for qb in range(4):
        Sq = S + 8*qb; t0, t1, dl = TMP, TMP+1, TMP+2
        both(f"v_max3_f32 v{t0}, v{Sq}, v{Sq+1}, v{Sq+2}"); both(f"v_max3_f32 v{t0}, v{t0}, v{Sq+3}, v{Sq+4}")
        both(f"v_max3_f32 v{t0}, v{t0}, v{Sq+5}, v{Sq+6}"); both(f"v_max_f32 v{t0}, v{t0}, v{Sq+7}")
        both(f"v_mov_b32 v{t1}, v{t0}"); both("s_nop 1"); both(f"v_permlane16_swap_b32 v{t0}, v{t1}"); both(f"v_max_f32 v{t0}, v{t0}, v{t1}")
        both(f"v_mov_b32 v{t1}, v{t0}"); both("s_nop 1"); both(f"v_permlane32_swap_b32 v{t0}, v{t1}"); both(f"v_max_f32 v{t0}, v{t0}, v{t1}")
        both(f"v_ceil_f32 v{dl}, v{t0}"); both(f"v_add_f32 v{dl}, {hex(f32bits(OFFSET))}, v{dl}")
        for i in range(8): both(f"v_sub_f32 v{Sq+i}, v{Sq+i}, v{dl}")
        for i in range(4): both(f"v_sub_f32 v{NM+4*qb+i}, 0, v{dl}")
        both(f"v_mov_b32 v{LR+qb}, 0")
    prev_trans = False
    uid = 0
    for g, x in sorted([(g, x) for g, x in sm_stream(0) if g < 64], key=lambda z: z[0]):
        if isinstance(x, tuple): continue
        both(x); both("s_nop 0")
    both("s_waitcnt lgkmcnt(0)")
    def body(i_body, last, uid):
        out = Asm()
        for u in range(4):
            t = 4*i_body + u
            mfm, gaps = attn_iter(name, t, u, last, f"{uid}_{u}", cfg)
            if PREFETCH:
                g = cfg.get("pfgap", [40, 40, 61, 40])[u]
                gaps[g].insert(0, f"buffer_load_dword v{vPFD+u}, v{vPF}, s[{SRD_PF+4*u}:{SRD_PF+4*u+3}], s{sPFA if u == 0 else sPFB} offen")
                if u == 0: gaps[g+1].insert(0, f"s_add_u32 s{sPFA}, s{sPFA}, {(8 << 20)//16}")
                if u == 3: gaps[g+1].insert(0, f"s_add_u32 s{sPFB}, s{sPFB}, {1024*7168//16}")
            interleave(out, mfm, gaps)
        return out.lines
    swap = [f"v_xor_b32 v{vCUR}, 0x10000, v{vCUR}", f"v_xor_b32 v{vNXT}, 0x10000, v{vNXT}",
            f"s_xor_b32 s{sMC}, s{sMC}, 0x10000", f"s_xor_b32 s{sMN}, s{sMN}, 0x10000"]
    if stamps: stamp(both, 3)
    a(f"s_mov_b32 s{sCNT}, 15")
    a(".p2align 6"); a.label(f"L_{name}_main")
    for l in body(0, False, "m"): a(l)
    for l in swap: a(l)
    a(f"s_sub_u32 s{sCNT}, s{sCNT}, 1"); a(f"s_cmp_lg_u32 s{sCNT}, 0"); a(f"s_cbranch_scc1 L_{name}_main")
    for l in body(15, True, "z"): a(l)
    nocold = lambda L: [l for l in L if "@cold" not in l]
    for ib in range(15): lin += nocold(body(ib, False, "m")) + swap + ["s_nop 0"]*3
    lin += nocold(body(15, True, "z"))
    if stamps: stamp(both, 4)
    both("s_nop 7")
    r0 = TMP
    both(f"s_lshl_b32 s38, s{sQB}, 4"); both(f"s_lshl_b32 s39, s{sWAVE}, 2"); both("s_add_u32 s38, s38, s39")
    both("s_lshl_b32 s38, s38, 17"); both(f"s_lshl_b32 s39, s{sHEAD}, 12"); both("s_add_u32 s38, s38, s39")
    for qb in range(4):
        t0, t1 = r0, r0 + 1
        both(f"v_mov_b32 v{t0}, v{LR+qb}"); both(f"v_mov_b32 v{t1}, v{LR+qb}"); both("s_nop 1")
        both(f"v_permlane16_swap_b32 v{t0}, v{t1}"); both(f"v_add_f32 v{t0}, v{t0}, v{t1}")
        both(f"v_mov_b32 v{t1}, v{t0}"); both("s_nop 1"); both(f"v_permlane32_swap_b32 v{t0}, v{t1}"); both(f"v_add_f32 v{t0}, v{t0}, v{t1}")
        both(f"v_rcp_f32 v{LT+qb}, v{t0}")
    both("s_nop 0")
    for qb in range(4):
        for s in range(4):
            X = TMP + 8*((qb*4 + s) % 2); Y = TMP + 16 + 4*((qb*4 + s) % 4)
            for j in range(8):
                both(f"v_accvgpr_read_b32 v{X+j}, a{O + 32*qb + 8*s + j}")
            for j in range(8): both(f"v_mul_f32 v{X+j}, v{X+j}, v{LT+qb}")
            for j in range(4): both(f"v_cvt_pk_bf16_f32 v{Y+j}, v{X+2*j}, v{X+2*j+1}")
            both(f"buffer_store_dwordx4 {vr(Y, 4)}, v{vLANE16}, s[{SRD_O}:{SRD_O+3}], s38 offen offset:{s*1024}{STF}")
        if qb < 3: both("s_add_u32 s38, s38, 0x20000")
    both("s_waitcnt vmcnt(0)")
    if stamps:
        stamp(both, 5); stamp_store(both, 6, sWS, kidx=2); both("s_waitcnt vmcnt(0)")
    a.label(f"L_{name}_end"); a("s_endpgm")
    slows = []
    for qb in range(4):
        for par in range(2):
            sp = slow_path(name, qb, par)
            for l in sp.lines: a(l)
            slows.append(sp.lines)
    return a, lin, slows

if __name__ == "__main__":
    a, lin, slows = gen_attn()
    e = check(lin, "attn")
    for s in slows: e += check(s, "slow")
    print("errors:", len(e), "instrs:", len(a.lines))
```

```python
from common import *
from k_attn import VmSim, mf

vLANE16 = 1; vW = 2; vB = 3; vW2 = 16
vA = 8
vT = 17
ACC = 64
AF = 0
BR = 64
sWS = 4; sWp = 6; sRES = 8; sOUT = 10
SRD_W = 12; SRD_A = 16; SRD_R = 20; SRD_O = 24; SRD_M = 28; SRD_X = 32; SRD_F = 36
sWAVE = 40; sTT = 41; sFT = 42; sKH = 43; sWOFF = 44; sWOFF2 = 45; sWM0 = 46; sMA = 47; sMB = 51; sBOFF = 48; sCNT = 49; sDBG = 60
D = 12; DB = 7; NBAR = 4
SPIN = 1 << 22

def gen_g128(name, KS_TOTAL, w_key, act_off, act_size, res_kind, out_kind, mod_idx, gscale, ex_off, kidx, stamps=False, mode='exchange'):
    NS = KS_TOTAL // 2
    a = Asm(); lin = []
    def both(x):
        n = len(a.lines); a(x); lin.extend(a.lines[n:])
    def step(s):
        mfm, gaps = [], [[] for _ in range(16)]
        bs = s % 8
        for i in range(8):
            for tb in range(2):
                d = vr(ACC + 8*i + 4*tb, 4)
                mfm.append(mf(d, ar(AF + 4*i, 4), ar(BR + 8*bs + 4*tb, 4), d if s > 0 else "0"))
        def ard(i, st, half):
            off = (st % 8) * 8192 + half * 4096
            return f"ds_read_b64_tr_b16 {ar(AF + 4*i + 2*half, 2)}, v{vA+i} offset:{off} ; @rd=W{st}"
        tog = (s % 8 == 7 and s + 1 < NS)
        gaps[0].append(ard(7, s, 0)); gaps[1].append(ard(7, s, 1))
        if s + 1 < NS:
            for i in range(7):
                if tog: gaps[2*i + 1].append(f"v_xor_b32 v{vA+i}, 0x10000, v{vA+i}")
                gaps[2*i + 2].append(ard(i, s + 1, 0)); gaps[2*i + 3].append(ard(i, s + 1, 1))
            if tog: gaps[15].append(f"v_xor_b32 v{vA+7}, 0x10000, v{vA+7}")
        if s + D < NS:
            tag = f"; @dma=W{s+D}"
            u = s % 8
            base, so = (sMA, (u + 4)*8192) if u < 4 else (sMB, (u - 4)*8192)
            gaps[0].append(f"s_add_u32 m0, s{base}, {so}")
            gaps[1].append(f"buffer_load_dwordx4 v{vW}, s[{SRD_W}:{SRD_W+3}], s{sWOFF} offen lds {tag}")
            gaps[4].append(f"s_add_u32 m0, s{base}, {so + 4096}")
            gaps[5].append(f"buffer_load_dwordx4 v{vW2}, s[{SRD_W}:{SRD_W+3}], s{sWOFF} offen lds {tag}")
            gaps[6].append(f"s_add_u32 s{sWOFF}, s{sWOFF}, {32*2048}")
        if s % 8 == 7:
            gaps[10].append(f"s_xor_b32 s{sMA}, s{sMA}, 0x10000"); gaps[11].append(f"s_xor_b32 s{sMB}, s{sMB}, 0x10000")
        if s + DB < NS:
            b2 = (s + DB) % 8
            gaps[9].append(f"buffer_load_dwordx4 {ar(BR + 8*b2, 4)}, v{vB}, s[{SRD_A}:{SRD_A+3}], s{sBOFF} offen ; @b=B{s+DB}")
            gaps[13].append(f"buffer_load_dwordx4 {ar(BR + 8*b2 + 4, 4)}, v{vB+1}, s[{SRD_A}:{SRD_A+3}], s{sBOFF} offen ; @b=B{s+DB}")
            gaps[14].append(f"s_add_u32 s{sBOFF}, s{sBOFF}, 1024")
        return mfm, gaps
    a(kernel_header(name))
    both("s_cmp_ge_u32 s2, 256"); both(f"s_cbranch_scc1 L_{name}_end")
    both(f"s_load_dwordx2 s[{sWS}:{sWS+1}], s[0:1], {KA['ws']}")
    both(f"s_load_dwordx2 s[{sWp}:{sWp+1}], s[0:1], {KA[w_key]}")
    if res_kind[0] == "arg": both(f"s_load_dwordx2 s[{sRES}:{sRES+1}], s[0:1], {KA[res_kind[1]]}")
    if out_kind[0] == "arg": both(f"s_load_dwordx2 s[{sOUT}:{sOUT+1}], s[0:1], {KA[out_kind[1]]}")
    if stamps: stamp(both, 0)
    both("v_lshrrev_b32 v4, 6, v0"); both("v_and_b32 v0, 63, v0"); both(f"v_readfirstlane_b32 s{sWAVE}, v4")
    both("s_and_b32 s52, s2, 7"); both("s_lshr_b32 s53, s2, 3")
    both(f"s_and_b32 s{sKH}, s52, 1")
    both("s_lshr_b32 s52, s52, 1"); both("s_lshl_b32 s52, s52, 2"); both(f"s_lshr_b32 s{sTT}, s53, 3"); both(f"s_add_u32 s{sTT}, s{sTT}, s52")
    both(f"s_and_b32 s{sFT}, s53, 7")
    both("s_waitcnt lgkmcnt(0)")
    h = Asm()
    srd(h, SRD_W, sWp, 0, KS_TOTAL*32*2048); srd(h, SRD_A, sWS, act_off, act_size)
    if res_kind[0] == "arg": srd(h, SRD_R, sRES, 0, 4 << 20)
    else: srd(h, SRD_R, sWS, res_kind[1], 4 << 20)
    if out_kind[0] == "arg": srd(h, SRD_O, sOUT, 0, 4 << 20)
    else: srd(h, SRD_O, sWS, out_kind[1], (8 << 20) if mode == "partial" else (4 << 20))
    srd(h, SRD_M, sWS, WS_MOD + mod_idx*4096, 4096)
    srd(h, SRD_X, sWS, ex_off, 8 << 20)
    srd(h, SRD_F, sWS, WS_FLAG, 256*128)
    for l in h.lines: both(l)
    both(f"v_lshlrev_b32 v{vLANE16}, 4, v0")
    both("v_lshrrev_b32 v19, 4, v0"); both(f"s_and_b32 s52, s{sWAVE}, 1"); both("s_lshl_b32 s52, s52, 2"); both("v_or_b32 v17, s52, v19")
    both("v_bfe_u32 v18, v0, 1, 3"); both("v_xor_b32 v17, v17, v18"); both("v_lshlrev_b32 v17, 5, v17")
    both("v_and_b32 v18, 1, v0"); both("v_lshl_add_u32 v17, v18, 4, v17"); both("v_lshl_add_u32 v17, v19, 11, v17")
    both(f"s_lshl_b32 s52, s{sFT}, 8"); both(f"v_add_u32 v{vW}, s52, v17"); both(f"v_add_u32 v{vW2}, {16*2048}, v{vW}")
    both(f"s_mul_i32 s{sWOFF}, s{sKH}, {NS*32*2048}"); both(f"s_lshl_b32 s52, s{sWAVE}, 13"); both(f"s_add_u32 s{sWOFF}, s{sWOFF}, s52")
    both(f"s_lshl_b32 s{sWM0}, s{sWAVE}, 10")
    both(f"s_add_u32 s{sMA}, s{sWM0}, 0x10000"); both(f"s_mov_b32 s{sMB}, s{sWM0}")
    both(f"s_lshl_b32 s52, s{sTT}, 3"); both(f"s_lshl_b32 s53, s{sWAVE}, 1"); both("s_add_u32 s52, s52, s53"); both(f"s_mul_i32 s52, s52, {KS_TOTAL*1024}")
    both(f"v_add_u32 v{vB}, s52, v{vLANE16}"); both(f"v_add_u32 v{vB+1}, {KS_TOTAL*1024}, v{vB}")
    both(f"s_mul_i32 s{sBOFF}, s{sKH}, {NS*1024}")
    both("v_lshrrev_b32 v19, 4, v0"); both("v_bfe_u32 v17, v0, 2, 2"); both("v_lshl_add_u32 v19, v19, 2, v17")
    both("v_and_b32 v17, 7, v19");
    if mode == "exchange": both(f"s_lshl_b32 s52, s{sKH}, 2"); both("v_xor_b32 v17, s52, v17")
    both("v_lshlrev_b32 v19, 8, v19"); both("v_and_b32 v18, 3, v0"); both("v_lshl_add_u32 v19, v18, 3, v19")
    for i in range(8):
        both(f"v_xor_b32 v18, {i}, v17"); both(f"v_lshl_add_u32 v{vA+i}, v18, 5, v19")
    vm = VmSim()
    for vs in range(-D, 0):
        st = vs + D
        both(f"s_add_u32 m0, s{sWM0}, {st*8192}"); both("s_nop 0")
        both(f"buffer_load_dwordx4 v{vW}, s[{SRD_W}:{SRD_W+3}], s{sWOFF} offen lds ; @dma=W{st}"); vm.issue(f"W{st}")
        both(f"s_add_u32 m0, s{sWM0}, {st*8192 + 4096}"); both("s_nop 0")
        both(f"buffer_load_dwordx4 v{vW2}, s[{SRD_W}:{SRD_W+3}], s{sWOFF} offen lds ; @dma=W{st}"); vm.issue(f"W{st}")
        both(f"s_add_u32 s{sWOFF}, s{sWOFF}, {32*2048}")
        sb = vs + DB
        if sb >= 0:
            for tb in range(2):
                both(f"buffer_load_dwordx4 {ar(BR + 8*(sb % 8) + 4*tb, 4)}, v{vB+tb}, s[{SRD_A}:{SRD_A+3}], s{sBOFF} offen"); vm.issue(f"B{sb}")
            both(f"s_add_u32 s{sBOFF}, s{sBOFF}, 1024")
    vRO = 5; vGO = 6; vXO = 7
    both("v_and_b32 v19, 15, v0"); both(f"s_lshl_b32 s52, s{sTT}, 7"); both(f"s_lshl_b32 s53, s{sWAVE}, 5"); both("s_add_u32 s52, s52, s53")
    both("v_add_u32 v19, s52, v19"); both("v_lshlrev_b32 v19, 11, v19")
    both("v_bfe_u32 v17, v0, 4, 1"); both("v_lshlrev_b32 v17, 4, v17"); both("v_bfe_u32 v18, v0, 5, 1"); both("v_lshl_or_b32 v17, v18, 3, v17")
    both(f"s_lshl_b32 s52, s{sFT}, 7")
    if mode == "exchange": both(f"s_lshl_b32 s53, s{sKH}, 6"); both("s_add_u32 s52, s52, s53")
    both("v_add_u32 v17, s52, v17")
    both(f"v_lshl_add_u32 v{vRO}, v17, 1, v19"); both(f"v_lshlrev_b32 v{vGO}, 2, v17")
    both(f"s_waitcnt vmcnt({vm.wait_for('B0')})")
    both("s_barrier")
    if stamps: stamp(both, 1)
    for i in range(7):
        for hh in range(2):
            both(f"ds_read_b64_tr_b16 {ar(AF + 4*i + 2*hh, 2)}, v{vA+i} offset:{hh*4096} ; @rd=W0")
    def qstep(s):
        mfm, gaps = step(s)
        out = Asm(); pre = {}
        if s > 0:
            out(f"s_waitcnt vmcnt({vm.wait_for(f'B{s}')})")
            if s % NBAR == NBAR - 1: out("s_barrier")
        for i in range(0, 8, 2):
            n = 10
            if s == NS - 1: n = [10, 8, 4, 0][i // 2]
            pre[2*i] = [f"s_waitcnt lgkmcnt({n})"]
        if s == NS - 1: pre[14] = ["s_waitcnt lgkmcnt(0)"]
        interleave(out, mfm, gaps, pre)
        for l in out.lines:
            I = parse(l)
            if I is not None and I.kind == "vm": vm.issue((I.tags.get("dma") or I.tags.get("b"))[0])
        return out.lines
    nb = NS // 8
    bodies = [sum((qstep(s) for s in range(8*b, 8*b + 8)), []) for b in range(nb)]
    strip = lambda L: [re.sub(r"\s*;.*", "", l) for l in L]
    for b in range(2, nb - 2): assert strip(bodies[1]) == strip(bodies[b]), f"loop body {b} not uniform"
    for l in bodies[0]: a(l)
    a(f"s_mov_b32 s{sCNT}, {nb - 3}")
    a(".p2align 4"); a.label(f"L_{name}_k")
    for l in bodies[1]: a(l)
    a(f"s_sub_u32 s{sCNT}, s{sCNT}, 1"); a(f"s_cmp_lg_u32 s{sCNT}, 0"); a(f"s_cbranch_scc1 L_{name}_k")
    for l in bodies[nb - 2] + bodies[nb - 1]: a(l)
    for b in bodies: lin += b
    if stamps: stamp(both, 2)
    if mode == "partial":
        both("s_nop 4")
        both(f"s_lshl_b32 s52, s{sKH}, 22")
        for p in range(4):
            for tb in range(2):
                X = ACC + 8*(2*p) + 4*tb; Y = ACC + 8*(2*p + 1) + 4*tb; T = 20 + 4*((2*p + tb) % 4)
                for r in range(4): both(f"v_permlane16_swap_b32 v{X+r}, v{Y+r}")
                both(f"v_cvt_pk_bf16_f32 v{T}, v{X}, v{X+1}"); both(f"v_cvt_pk_bf16_f32 v{T+1}, v{X+2}, v{X+3}")
                both(f"v_cvt_pk_bf16_f32 v{T+2}, v{Y}, v{Y+1}"); both(f"v_cvt_pk_bf16_f32 v{T+3}, v{Y+2}, v{Y+3}")
                both(f"s_add_u32 s53, s52, {tb*16*2048 + p*64}")
                both(f"buffer_store_dwordx4 {vr(T, 4)}, v{vRO}, s[{SRD_O}:{SRD_O+3}], s53 offen{STF}")
        if stamps:
            both("s_waitcnt vmcnt(0)")
            for i in range(3, 7): stamp(both, i)
            stamp_store(both, 7, sWS, vtmp=200, kidx=kidx); both("s_waitcnt vmcnt(0)")
        a.label(f"L_{name}_end"); a("s_endpgm")
        return a, [lin]
    both(f"s_lshl_b32 s52, s2, 15"); both(f"s_lshl_b32 s53, s{sWAVE}, 13"); both("s_add_u32 s52, s52, s53")
    both("s_xor_b32 s54, s2, 1"); both("s_lshl_b32 s54, s54, 15"); both("s_add_u32 s54, s54, s53")
    both("s_nop 4")
    for q in range(8):
        i, tb = 4 + q // 2, q % 2
        if q == 4: both("s_add_u32 s52, s52, 4096")
        both(f"buffer_store_dwordx4 {vr(ACC + 8*i + 4*tb, 4)}, v{vLANE16}, s[{SRD_X}:{SRD_X+3}], s52 offen offset:{(q % 4)*1024} sc1")
    RES = 16; GV = 32
    for p in range(2):
        for tb in range(2):
            both(f"s_mov_b32 s53, {tb*16*2048 + p*64}")
            both(f"buffer_load_dwordx4 {vr(RES + 4*(2*p + tb), 4)}, v{vRO}, s[{SRD_R}:{SRD_R+3}], s53 offen")
        both(f"buffer_load_dwordx4 {vr(GV + 8*p, 4)}, v{vGO}, s[{SRD_M}:{SRD_M+3}], 0 offen offset:{p*128}")
        both(f"buffer_load_dwordx4 {vr(GV + 8*p + 4, 4)}, v{vGO}, s[{SRD_M}:{SRD_M+3}], 0 offen offset:{p*128 + 16}")
    both("s_waitcnt vmcnt(8)")
    both("s_barrier")
    if stamps: stamp(both, 3)
    a(f"s_cmp_lg_u32 s{sWAVE}, 0"); a(f"s_cbranch_scc1 L_{name}_wait")
    a("s_lshl_b32 s52, s2, 7"); a("s_xor_b32 s53, s52, 128")
    a("v_mov_b32 v48, 1"); a("v_mov_b32 v49, s52"); a("v_mov_b32 v51, s53")
    a("s_mov_b64 s[58:59], exec"); a("s_mov_b64 exec, 1")
    a(f"buffer_store_dword v48, v49, s[{SRD_F}:{SRD_F+3}], 0 offen sc1")
    a(f"s_mov_b32 s57, {SPIN}")
    a.label(f"L_{name}_poll")
    a(f"buffer_load_dword v50, v51, s[{SRD_F}:{SRD_F+3}], 0 offen sc1")
    a("s_waitcnt vmcnt(0)")
    a("v_readfirstlane_b32 s60, v50") if False else a("v_readfirstlane_b32 s53, v50")
    a("s_cmp_eq_u32 s53, 1"); a(f"s_cbranch_scc1 L_{name}_got")
    a("s_sleep 1"); a("s_sub_u32 s57, s57, 1"); a("s_cmp_lg_u32 s57, 0"); a(f"s_cbranch_scc1 L_{name}_poll")
    a.label(f"L_{name}_got")
    a("s_mov_b64 exec, s[58:59]")
    a.label(f"L_{name}_wait")
    both("s_barrier")
    if stamps: stamp(both, 4)
    XB = 96 + 32
    for q in range(8):
        if q == 4: both("s_add_u32 s54, s54, 4096")
        both(f"buffer_load_dwordx4 {vr(XB + 4*q, 4)}, v{vLANE16}, s[{SRD_X}:{SRD_X+3}], s54 offen offset:{(q % 4)*1024} sc1")
    if gscale != 1.0:
        both(f"s_mov_b32 s52, {hex(f32bits(gscale))}")
    both("s_waitcnt vmcnt(8)")
    if gscale != 1.0:
        for i in range(16): both(f"v_mul_f32 v{GV+i}, s52, v{GV+i}")
    for q in range(8):
        both(f"s_waitcnt vmcnt({7-q})")
        i, tb = q // 2, q % 2
        for r in range(4): both(f"v_add_f32 v{ACC + 8*i + 4*tb + r}, v{ACC + 8*i + 4*tb + r}, v{XB + 4*q + r}")
    if stamps: stamp(both, 5)
    for p in range(2):
        for tb in range(2):
            X = ACC + 8*(2*p) + 4*tb; Y = ACC + 8*(2*p + 1) + 4*tb
            both("s_nop 1")
            for r in range(4): both(f"v_permlane16_swap_b32 v{X+r}, v{Y+r}")
            rr = RES + 4*(2*p + tb); T = 52
            for i in range(4):
                both(f"v_lshlrev_b32 v{T+2*i}, 16, v{rr+i}"); both(f"v_and_b32 v{T+2*i+1}, 0xffff0000, v{rr+i}")
            for r in range(4):
                both(f"v_fmac_f32 v{T+r}, v{X+r}, v{GV+8*p+r}"); both(f"v_fmac_f32 v{T+4+r}, v{Y+r}, v{GV+8*p+4+r}")
            for i in range(4): both(f"v_cvt_pk_bf16_f32 v{rr+i}, v{T+2*i}, v{T+2*i+1}")
            both(f"s_mov_b32 s53, {tb*16*2048 + p*64}")
            both(f"buffer_store_dwordx4 {vr(rr, 4)}, v{vRO}, s[{SRD_O}:{SRD_O+3}], s53 offen{STF}")
    if stamps:
        both("s_waitcnt vmcnt(0)"); stamp(both, 6); stamp_store(both, 7, sWS, vtmp=200, kidx=kidx); both("s_waitcnt vmcnt(0)")
    a.label(f"L_{name}_end"); a("s_endpgm")
    return a, [lin]

def gen_oproj(stamps=False):
    return gen_g128("oproj_kernel", 128, "wo", WS_OF, 16 << 20, ("arg", "x"), ("ws", WS_OP), 2, 1.0, WS_EX, 3, stamps, mode="partial")
def gen_down(stamps=False):
    return gen_g128("down_kernel", 112, "wd", WS_HHF, 128*112*1024, ("ws", WS_X2), ("arg", "out"), 5, 1.0/LOG2E, WS_EX + (8 << 20), 6, stamps)

if __name__ == "__main__":
    for f in (gen_oproj, gen_down):
        a, lins = f()
        e = []
        for l in lins: e += check(l, "g128")
        print("errors:", len(e), "instrs:", len(a.lines))
```

```python
from common import *
from k_attn import VmSim, mf

vLANE16 = 1; vW = 2; vB = 3
vA = 8
TMP = 16
ACC = 32
AF = 0
BR = 64
sWS = 4; sWG = 6; sWU = 8
SRD_G = 12; SRD_U = 16; SRD_H = 20; SRD_O = 24
sWAVE = 28; sTB = 29; sCJ = 30; sWOFF = 31; sWOFF2 = 32; sWM0 = 33; sSLOT = 34; sBOFF = 35; sCNT = 36; sM = 37
PITCH = 7168
NS = 32; D = 6; DB = 3

def step(s):
    mfm, gaps = [], [[] for _ in range(56)]
    bs = s % 4
    for at in range(14):
        for tb in range(4):
            d = vr(ACC + 16*at + 4*tb, 4)
            mfm.append(mf(d, ar(AF + 4*at, 4), ar(BR + 16*bs + 4*tb, 4), d if s > 0 else "0"))
    def ard(at, st, half):
        i, m = at // 2, at % 2
        off = (st % 4) * 16384 + m * 8192 + half * 1024
        return f"ds_read_b64_tr_b16 {ar(AF + 4*at + 2*half, 2)}, v{vA+i} offset:{off} ; @rd=W{st}"
    gaps[0].append(ard(13, s, 0)); gaps[1].append(ard(13, s, 1))
    if s % 4 == 3 and s + 1 < NS:
        for i in range(7): gaps[2 + (i // 4)].append(f"v_xor_b32 v{vA+i}, 0x10000, v{vA+i}")
    if s + 1 < NS:
        for at in range(13):
            gaps[4*at + 4].append(ard(at, s + 1, 0)); gaps[4*at + 5].append(ard(at, s + 1, 1))
    if s + D < NS:
        tag = f"; @dma=W{s+D}"
        gaps[2].append(f"s_add_u32 s{sM}, s{sWM0}, s{sSLOT}")
        gaps[3].append(f"s_mov_b32 m0, s{sM}")
        gaps[6].append(f"buffer_load_dwordx4 v{vW}, s[{SRD_G}:{SRD_G+3}], s{sWOFF} offen lds {tag}")
        gaps[7].append(f"s_add_u32 s{sWOFF2}, s{sWOFF}, {4*PITCH}")
        gaps[10].append(f"s_add_u32 m0, s{sM}, 1024")
        gaps[11].append(f"buffer_load_dwordx4 v{vW}, s[{SRD_G}:{SRD_G+3}], s{sWOFF2} offen lds {tag}")
        gaps[14].append(f"s_add_u32 m0, s{sM}, 8192")
        gaps[15].append(f"buffer_load_dwordx4 v{vW}, s[{SRD_U}:{SRD_U+3}], s{sWOFF} offen lds {tag}")
        gaps[18].append(f"s_add_u32 m0, s{sM}, {8192+1024}")
        gaps[19].append(f"buffer_load_dwordx4 v{vW}, s[{SRD_U}:{SRD_U+3}], s{sWOFF2} offen lds {tag}")
        gaps[22].append(f"s_add_u32 s{sWOFF}, s{sWOFF}, {32*PITCH}")
        gaps[23].append(f"s_add_u32 s{sSLOT}, s{sSLOT}, 16384")
        gaps[26].append(f"s_and_b32 s{sSLOT}, s{sSLOT}, 0x1ffff")
    if s + DB < NS:
        b2 = (s + DB) % 4
        for tb in range(4):
            gaps[27 + 6*tb].append(f"buffer_load_dwordx4 {ar(BR + 16*b2 + 4*tb, 4)}, v{vB+tb}, s[{SRD_H}:{SRD_H+3}], s{sBOFF} offen ; @b=B{s+DB}")
        gaps[50].append(f"s_add_u32 s{sBOFF}, s{sBOFF}, 1024")
    return mfm, gaps

def epilogue(par):
    a = Asm()
    def hh(i, tb, dst):
        g = ACC + 16*(2*i) + 4*tb; u = ACC + 16*(2*i + 1) + 4*tb
        for r in range(4): a(f"v_exp_f32 v{g+r}, -v{g+r}")
        for r in range(4): a(f"v_add_f32 v{g+r}, 1.0, v{g+r}")
        for r in range(4): a(f"v_rcp_f32 v{g+r}, v{g+r}")
        for r in range(4): a(f"v_mul_f32 v{g+r}, v{u+r}, v{g+r}")
        a(f"v_cvt_pk_bf16_f32 v{dst}, v{g}, v{g+1}"); a(f"v_cvt_pk_bf16_f32 v{dst+1}, v{g+2}, v{g+3}")
    groups = [(0, 1), (2, 3), (4, 5), (6,)] if par == 0 else [(0,), (1, 2), (3, 4), (5, 6)]
    n = 0
    for tb in range(4):
        for gi, grp in enumerate(groups):
            T0 = TMP + 4*(n % 4); n += 1
            if len(grp) == 2:
                hh(grp[0], tb, T0); hh(grp[1], tb, T0 + 2)
                a(f"buffer_store_dwordx4 {vr(T0, 4)}, v{vLANE16}, s[{SRD_O}:{SRD_O+3}], s38 offen offset:{gi*1024}{STF}")
            else:
                half = 0 if par == 0 else 1
                hh(grp[0], tb, T0)
                a(f"buffer_store_dwordx2 {vr(T0, 2)}, v{vLANE16}, s[{SRD_O}:{SRD_O+3}], s38 offen offset:{gi*1024 + 8*half}{STF}")
        if tb < 3: a(f"s_add_u32 s38, s38, {112*1024}")
    return a

def gen_gu(name="gu_kernel", stamps=False):
    a = Asm(); lin = []
    def both(x):
        n = len(a.lines); a(x); lin.extend(a.lines[n:])
    a(kernel_header(name))
    both("s_cmp_ge_u32 s2, 256"); both(f"s_cbranch_scc1 L_{name}_end")
    both(f"s_load_dwordx2 s[{sWS}:{sWS+1}], s[0:1], {KA['ws']}")
    both(f"s_load_dwordx2 s[{sWG}:{sWG+1}], s[0:1], {KA['wg']}")
    both(f"s_load_dwordx2 s[{sWU}:{sWU+1}], s[0:1], {KA['wu']}")
    if stamps: stamp(both, 0)
    both("v_lshrrev_b32 v4, 6, v0"); both("v_and_b32 v0, 63, v0"); both(f"v_readfirstlane_b32 s{sWAVE}, v4")
    both("s_and_b32 s38, s2, 7"); both("s_lshr_b32 s39, s2, 3")
    both("s_and_b32 s40, s38, 1"); both("s_lshl_b32 s40, s40, 2"); both(f"s_lshr_b32 s{sTB}, s39, 3"); both(f"s_add_u32 s{sTB}, s{sTB}, s40")
    both("s_lshr_b32 s40, s38, 1"); both("s_lshl_b32 s40, s40, 3"); both("s_and_b32 s39, s39, 7"); both(f"s_add_u32 s{sCJ}, s40, s39")
    both("s_waitcnt lgkmcnt(0)")
    h = Asm()
    srd(h, SRD_G, sWG, 0, 1024*PITCH); srd(h, SRD_U, sWU, 0, 1024*PITCH)
    srd(h, SRD_H, sWS, WS_H2F, 4 << 20); srd(h, SRD_O, sWS, WS_HHF, 128*112*1024)
    for l in h.lines: both(l)
    both(f"v_lshlrev_b32 v{vLANE16}, 4, v0")
    both("v_lshrrev_b32 v9, 4, v0")
    both(f"s_and_b32 s38, s{sWAVE}, 1"); both("s_lshl_b32 s38, s38, 2")
    both("v_or_b32 v10, s38, v9"); both("v_bfe_u32 v11, v0, 1, 3"); both("v_xor_b32 v10, v10, v11")
    both("v_cmp_eq_u32 vcc, 7, v10")
    both("v_lshlrev_b32 v10, 5, v10")
    both("v_and_b32 v11, 1, v0"); both("v_lshlrev_b32 v11, 4, v11")
    both(f"v_mul_u32_u24 v12, {PITCH}, v9")
    both("v_add3_u32 v10, v10, v11, v12")
    both(f"s_mul_i32 s38, s{sCJ}, 224"); both("v_add_u32 v10, s38, v10")
    both("v_mov_b32 v11, 0x40000000")
    both(f"v_cndmask_b32 v{vW}, v10, v11, vcc")
    both(f"s_lshl_b32 s38, s{sTB}, 4"); both(f"s_lshl_b32 s39, s{sWAVE}, 2"); both("s_add_u32 s38, s38, s39"); both("s_lshl_b32 s38, s38, 15")
    both(f"v_add_u32 v{vB}, s38, v{vLANE16}")
    for tb in range(1, 4): both(f"v_add_u32 v{vB+tb}, 0x8000, v{vB+tb-1}")
    both("v_lshrrev_b32 v17, 4, v0"); both("v_bfe_u32 v18, v0, 2, 2")
    both("v_lshl_add_u32 v19, v17, 3, v18"); both("v_lshlrev_b32 v19, 8, v19")
    both("v_and_b32 v20, 3, v0"); both("v_lshl_add_u32 v19, v20, 3, v19")
    both("v_and_b32 v17, 1, v17"); both("v_lshl_or_b32 v18, v17, 2, v18")
    for i in range(7):
        both(f"v_xor_b32 v20, {i}, v18"); both(f"v_lshl_add_u32 v{vA+i}, v20, 5, v19")
    both(f"s_mul_i32 s{sWOFF}, s{sWAVE}, {8*PITCH}")
    both(f"s_lshl_b32 s{sWM0}, s{sWAVE}, 11")
    both(f"s_mov_b32 s{sSLOT}, 0"); both(f"s_mov_b32 s{sBOFF}, 0")
    vm = VmSim()
    for st in range(D):
        both(f"s_add_u32 s{sM}, s{sWM0}, s{sSLOT}"); both(f"s_add_u32 s{sWOFF2}, s{sWOFF}, {4*PITCH}")
        for (srdr, so, mo) in ((SRD_G, sWOFF, 0), (SRD_G, sWOFF2, 1024), (SRD_U, sWOFF, 8192), (SRD_U, sWOFF2, 9216)):
            both(f"s_add_u32 m0, s{sM}, {mo}"); both("s_nop 0")
            both(f"buffer_load_dwordx4 v{vW}, s[{srdr}:{srdr+3}], s{so} offen lds ; @dma=W{st}"); vm.issue(f"W{st}")
        both(f"s_add_u32 s{sWOFF}, s{sWOFF}, {32*PITCH}"); both(f"s_add_u32 s{sSLOT}, s{sSLOT}, 16384")
        if st >= 3:
            for tb in range(4):
                both(f"buffer_load_dwordx4 {ar(BR + 16*((st-3)%4) + 4*tb, 4)}, v{vB+tb}, s[{SRD_H}:{SRD_H+3}], s{sBOFF} offen"); vm.issue(f"B{st-3}")
            both(f"s_add_u32 s{sBOFF}, s{sBOFF}, 1024")
    both(f"s_waitcnt vmcnt({vm.wait_for('B0')})")
    both("s_barrier")
    if stamps: stamp(both, 1)
    for at in range(13):
        for hh in range(2):
            i, m = at // 2, at % 2
            both(f"ds_read_b64_tr_b16 {ar(AF + 4*at + 2*hh, 2)}, v{vA+i} offset:{m*8192 + hh*1024} ; @rd=W0")
            if at == 6 and hh == 1: both("s_waitcnt lgkmcnt(6)")
    def qstep(s):
        mfm, gaps = step(s)
        out = Asm(); pre = {}
        if s > 0:
            out(f"s_waitcnt vmcnt({vm.wait_for(f'B{s}')})")
            if s % 2 == 1: out("s_barrier")
        if s < NS - 1:
            pre[0] = ["s_waitcnt lgkmcnt(14)"]; pre[24] = ["s_waitcnt lgkmcnt(14)"]; pre[48] = ["s_waitcnt lgkmcnt(14)"]
        else:
            pre[0] = ["s_waitcnt lgkmcnt(14)"]; pre[24] = ["s_waitcnt lgkmcnt(0)"]
        interleave(out, mfm, gaps, pre)
        for l in out.lines:
            I = parse(l)
            if I is not None and I.kind == "vm": vm.issue((I.tags.get("dma") or I.tags.get("b"))[0])
        return out.lines
    bodies = [sum((qstep(s) for s in range(4*b, 4*b + 4)), []) for b in range(8)]
    strip = lambda L: [re.sub(r"\s*;.*", "", l) for l in L]
    for b in range(2, 6): assert strip(bodies[1]) == strip(bodies[b]), f"loop body {b} not uniform"
    for l in bodies[0]: a(l)
    a(f"s_mov_b32 s{sCNT}, 5")
    a(".p2align 4"); a.label(f"L_{name}_k")
    for l in bodies[1]: a(l)
    a(f"s_sub_u32 s{sCNT}, s{sCNT}, 1"); a(f"s_cmp_lg_u32 s{sCNT}, 0"); a(f"s_cbranch_scc1 L_{name}_k")
    for l in bodies[6] + bodies[7]: a(l)
    for b in bodies: lin += b
    if stamps: stamp(both, 2)
    both("s_nop 7")
    both(f"s_lshl_b32 s38, s{sTB}, 4"); both(f"s_lshl_b32 s39, s{sWAVE}, 2"); both("s_add_u32 s38, s38, s39")
    both("s_mul_i32 s38, s38, 112"); both(f"s_mul_i32 s39, s{sCJ}, 7"); both("s_lshr_b32 s39, s39, 1")
    both("s_add_u32 s38, s38, s39"); both("s_lshl_b32 s38, s38, 10")
    a(f"s_bitcmp1_b32 s{sCJ}, 0"); a(f"s_cbranch_scc1 L_{name}_odd")
    e0, e1 = epilogue(0), epilogue(1)
    for l in e0.lines: a(l)
    a(f"s_branch L_{name}_fin")
    a.label(f"L_{name}_odd")
    for l in e1.lines: a(l)
    a.label(f"L_{name}_fin")
    lin2 = lin + e1.lines
    lin += e0.lines
    if stamps:
        a("s_waitcnt vmcnt(0)"); stamp(a, 3); stamp_store(a, 4, sWS, vtmp=16, kidx=5); a("s_waitcnt vmcnt(0)")
    a.label(f"L_{name}_end"); a("s_endpgm")
    return a, [lin, lin2]

if __name__ == "__main__":
    a, lins = gen_gu()
    e = []
    for l in lins: e += check(l, "gu")
    print("errors:", len(e), "instrs:", len(a.lines))
```

```python
from common import *
from k_attn import VmSim, mf

vLANE16 = 1; vW = 2; vB = 3
vA = 11
vT = 16
AFV = 64
BRV = 96
ACC = 0
sWS = 4; sWp = 6; sRES = 8; sOUT = 10
SRD_W = 12; SRD_A = 16; SRD_R = 20; SRD_O = 24; SRD_M = 28
sWAVE = 32; sTT = 33; sFT = 34; sWOFF = 35; sWM0 = 36; sBOFF = 37; sCNT = 40; sT2 = 41

def bring(slot, tb):
    return ar(128 + 32*slot + 4*tb, 4)

def gen_sk(name, KS_TOTAL, w_key, act_off, act_size, res_kind, out_kind, mod_idx, gscale, stamps=False):
    NS = KS_TOTAL // 4
    a = Asm(); lin = []
    def both(x):
        n = len(a.lines); a(x); lin.extend(a.lines[n:])
    def step(s):
        mfm, gaps = [], [[] for _ in range(32)]
        bs = s % 4
        for ft in range(4):
            for tb in range(8):
                d = ar(ACC + 4*(8*ft + tb), 4)
                mfm.append(mf(d, vr(AFV + 4*ft, 4), bring(bs, tb), d if s > 0 else "0"))
        def ard(ft, st, half):
            off = (st % 4) * 4096 + half * 2048
            return f"ds_read_b64_tr_b16 {vr(AFV + 4*ft + 2*half, 2)}, v{vA+ft} offset:{off}"
        gaps[0].append(ard(3, s, 0)); gaps[1].append(ard(3, s, 1))
        if s + 1 < NS:
            for ft in range(3):
                gaps[8*ft + 8].append(ard(ft, s + 1, 0)); gaps[8*ft + 9].append(ard(ft, s + 1, 1))
        if s + 3 < NS:
            sl = (s + 3) % 4
            for j in range(4):
                gaps[2*j + 1 if j else 1].append(f"s_add_u32 m0, s{sWM0}, {sl*4096 + j*1024}")
                gaps[2*j + 2].append(f"buffer_load_dwordx4 v{vW}, s[{SRD_W}:{SRD_W+3}], s{sWOFF} offen lds")
                gaps[2*j + 2].append(f"s_add_u32 s{sWOFF}, s{sWOFF}, {8*2048}")
            for tb in range(8):
                gaps[11 + 2*tb + (1 if tb >= 3 else 0)].append(f"buffer_load_dwordx4 {bring(sl, tb)}, v{vB+tb}, s[{SRD_A}:{SRD_A+3}], s{sBOFF} offen ; @b=B{s+3}")
            gaps[30].append(f"s_add_u32 s{sBOFF}, s{sBOFF}, 1024")
        return mfm, gaps
    a(kernel_header(name))
    both("s_cmp_ge_u32 s2, 256"); both(f"s_cbranch_scc1 L_{name}_end")
    both(f"s_load_dwordx2 s[{sWS}:{sWS+1}], s[0:1], {KA['ws']}")
    both(f"s_load_dwordx2 s[{sWp}:{sWp+1}], s[0:1], {KA[w_key]}")
    if res_kind[0] == "arg": both(f"s_load_dwordx2 s[{sRES}:{sRES+1}], s[0:1], {KA[res_kind[1]]}")
    if out_kind[0] == "arg": both(f"s_load_dwordx2 s[{sOUT}:{sOUT+1}], s[0:1], {KA[out_kind[1]]}")
    if stamps: stamp(both, 0)
    both("v_lshrrev_b32 v4, 6, v0"); both("v_and_b32 v0, 63, v0"); both(f"v_readfirstlane_b32 s{sWAVE}, v4")
    both("s_and_b32 s42, s2, 7"); both("s_lshr_b32 s43, s2, 3")
    both("s_lshr_b32 s44, s42, 1"); both("s_lshl_b32 s44, s44, 2"); both(f"s_lshr_b32 s{sTT}, s43, 3"); both(f"s_add_u32 s{sTT}, s{sTT}, s44")
    both("s_and_b32 s44, s42, 1"); both("s_lshl_b32 s44, s44, 3"); both("s_and_b32 s43, s43, 7"); both(f"s_add_u32 s{sFT}, s44, s43")
    both("s_waitcnt lgkmcnt(0)")
    h = Asm()
    srd(h, SRD_W, sWp, 0, KS_TOTAL*32*2048); srd(h, SRD_A, sWS, act_off, act_size)
    if res_kind[0] == "arg": srd(h, SRD_R, sRES, 0, 4 << 20)
    else: srd(h, SRD_R, sWS, res_kind[1], 4 << 20)
    if out_kind[0] == "arg": srd(h, SRD_O, sOUT, 0, 4 << 20)
    else: srd(h, SRD_O, sWS, out_kind[1], 4 << 20)
    srd(h, SRD_M, sWS, WS_MOD + mod_idx*4096, 4096)
    for l in h.lines: both(l)
    both(f"v_lshlrev_b32 v{vLANE16}, 4, v0")
    both("v_lshrrev_b32 v16, 3, v0"); both("v_bfe_u32 v17, v0, 4, 2"); both("v_bfe_u32 v18, v0, 1, 2"); both("v_xor_b32 v17, v17, v18")
    both("v_lshlrev_b32 v17, 5, v17"); both("v_and_b32 v18, 1, v0"); both("v_lshl_add_u32 v17, v18, 4, v17")
    both("v_lshl_add_u32 v17, v16, 11, v17"); both(f"s_lshl_b32 s42, s{sFT}, 7"); both(f"v_add_u32 v{vW}, s42, v17")
    both(f"s_mul_i32 s42, s{sTT}, {8*KS_TOTAL*1024}"); both(f"v_add_u32 v{vB}, s42, v{vLANE16}")
    for tb in range(1, 8): both(f"v_add_u32 v{vB+tb}, {KS_TOTAL*1024}, v{vB+tb-1}")
    both(f"s_mul_i32 s{sBOFF}, s{sWAVE}, {NS*1024}")
    both(f"s_mul_i32 s{sWOFF}, s{sWAVE}, {NS*32*2048}")
    both(f"s_lshl_b32 s{sWM0}, s{sWAVE}, 14")
    both("v_lshrrev_b32 v16, 4, v0"); both("v_bfe_u32 v17, v0, 2, 2"); both("v_lshl_add_u32 v16, v16, 2, v17")
    both("v_bfe_u32 v17, v16, 1, 2")
    both("v_lshlrev_b32 v16, 7, v16"); both("v_and_b32 v18, 3, v0"); both("v_lshl_add_u32 v16, v18, 3, v16")
    both(f"v_add_u32 v16, s{sWM0}, v16")
    for ft in range(4):
        both(f"v_xor_b32 v18, {ft}, v17"); both(f"v_lshl_add_u32 v{vA+ft}, v18, 5, v16")
    vm = VmSim()
    for st in range(3):
        for j in range(4):
            both(f"s_add_u32 m0, s{sWM0}, {st*4096 + j*1024}"); both("s_nop 0")
            both(f"buffer_load_dwordx4 v{vW}, s[{SRD_W}:{SRD_W+3}], s{sWOFF} offen lds"); vm.issue(f"W{st}")
            both(f"s_add_u32 s{sWOFF}, s{sWOFF}, {8*2048}")
        for tb in range(8):
            both(f"buffer_load_dwordx4 {bring(st, tb)}, v{vB+tb}, s[{SRD_A}:{SRD_A+3}], s{sBOFF} offen"); vm.issue(f"B{st}")
        both(f"s_add_u32 s{sBOFF}, s{sBOFF}, 1024")
    RES = 32
    GV = 48
    vRO = 15
    both("v_lshrrev_b32 v16, 3, v0"); both(f"s_lshl_b32 s42, s{sTT}, 7"); both(f"s_lshl_b32 s43, s{sWAVE}, 5"); both("s_add_u32 s42, s42, s43")
    both("v_add_u32 v16, s42, v16"); both("v_lshlrev_b32 v16, 11, v16"); both("v_and_b32 v17, 7, v0"); both("v_lshl_add_u32 v16, v17, 4, v16")
    both(f"s_lshl_b32 s42, s{sFT}, 7"); both(f"v_add_u32 v{vRO}, s42, v16")
    both(f"v_lshlrev_b32 v17, 5, v17"); both(f"s_lshl_b32 s42, s{sFT}, 8"); both(f"v_add_u32 v17, s42, v17")
    both(f"s_waitcnt vmcnt({vm.wait_for('W0')})")
    if stamps: stamp(both, 1)
    for ft in range(3):
        for hh in range(2):
            both(f"ds_read_b64_tr_b16 {vr(AFV + 4*ft + 2*hh, 2)}, v{vA+ft} offset:{hh*2048}")
    def qstep(s):
        mfm, gaps = step(s)
        out = Asm(); pre = {}
        out(f"s_waitcnt vmcnt({vm.wait_for(f'B{s}') if f'B{s}' in vm.q else 63})")
        for ft in range(4):
            n = 4
            if s == NS - 1: n = [4, 4, 2, 0][ft]
            pre[8*ft] = [f"s_waitcnt lgkmcnt({n})"]
        res = Asm()
        for l in out.lines: res(l)
        for i, m in enumerate(mfm):
            for x in pre.get(i, []): res(x)
            if i == 8 and s + 1 < NS:
                if f"W{s+1}" in vm.q: res(f"s_waitcnt vmcnt({vm.wait_for(f'W{s+1}')})")
            res(m)
            for x in gaps[i]:
                res(x)
                I = parse(x)
                if I is not None and I.kind == "vm": vm.issue((I.tags.get("dma") or I.tags.get("b"))[0])
        return res.lines
    nb = NS // 4
    bodies = [sum((qstep(s) for s in range(4*b, 4*b + 4)), []) for b in range(nb)]
    strip = lambda L: [re.sub(r"\s*;.*", "", l) for l in L]
    for b in range(2, nb - 1): assert strip(bodies[1]) == strip(bodies[b]), f"loop body {b} not uniform"
    for l in bodies[0]: a(l)
    a(f"s_mov_b32 s{sCNT}, {nb - 2}")
    a(".p2align 4"); a.label(f"L_{name}_k")
    for l in bodies[1]: a(l)
    a(f"s_sub_u32 s{sCNT}, s{sCNT}, 1"); a(f"s_cmp_lg_u32 s{sCNT}, 0"); a(f"s_cbranch_scc1 L_{name}_k")
    for l in bodies[nb - 1]: a(l)
    for b in bodies: lin += b
    if stamps: stamp(both, 2)
    for j in range(4):
        both(f"buffer_load_dwordx4 {vr(RES + 4*j, 4)}, v{vRO}, s[{SRD_R}:{SRD_R+3}], 0 offen")
        if j < 3: both(f"v_add_u32 v{vRO}, {8*2048}, v{vRO}")
    both(f"v_subrev_u32 v{vRO}, {3*8*2048}, v{vRO}")
    both(f"buffer_load_dwordx4 {vr(GV, 4)}, v17, s[{SRD_M}:{SRD_M+3}], 0 offen")
    both(f"buffer_load_dwordx4 {vr(GV+4, 4)}, v17, s[{SRD_M}:{SRD_M+3}], 0 offen offset:16")
    both("s_barrier")
    both("v_and_b32 v16, 15, v0"); both("v_lshrrev_b32 v18, 4, v0")
    both(f"s_lshl_b32 s42, s{sWAVE}, 15"); both("v_lshlrev_b32 v19, 8, v16"); both("v_add_u32 v19, s42, v19")
    for ft in range(4):
        both(f"v_add_u32 v20, {4*ft}, v18"); both("v_xor_b32 v20, v20, v16"); both(f"v_lshl_add_u32 v{vA+ft}, v20, 4, v19")
    both("s_nop 3")
    for ft in range(4):
        for tb in range(8):
            both(f"ds_write_b128 v{vA+ft}, {ar(ACC + 4*(8*ft + tb), 4)} offset:{tb*4096}")
    RA = 20
    both("v_lshrrev_b32 v16, 3, v0"); both("v_and_b32 v18, 7, v0"); both("v_lshlrev_b32 v18, 1, v18")
    both(f"s_lshl_b32 s42, s{sWAVE}, 13"); both("v_lshlrev_b32 v19, 8, v16"); both("v_add_u32 v19, s42, v19")
    for jp in range(2):
        for hh in range(2):
            r = RA + 2*jp + hh
            both(f"v_add_u32 v28, {hh}, v18"); both(f"v_add_u32 v29, {8*jp}, v16"); both("v_xor_b32 v28, v28, v29")
            both(f"v_lshl_add_u32 v{r}, v28, 4, v19")
            if jp: both(f"v_add_u32 v{r}, {8*256}, v{r}")
            both(f"v_add_u32 v{r+4}, 0x10000, v{r}")
    both("s_waitcnt lgkmcnt(0)")
    both("s_barrier")
    PB = 96
    gs = f32bits(gscale)
    both("s_waitcnt vmcnt(0)")
    if gscale != 1.0:
        both(f"s_mov_b32 s42, {hex(gs)}")
        for i in range(8): both(f"v_mul_f32 v{GV+i}, s42, v{GV+i}")
    for j in range(4):
        jp, jj = j % 2, j // 2
        B0 = PB + 32*(j % 2)
        for src in range(4):
            for hh in range(2):
                r = RA + 2*jp + hh + (4 if src >= 2 else 0)
                both(f"ds_read_b128 {vr(B0 + 8*src + 4*hh, 4)}, v{r} offset:{jj*4096 + (src & 1)*32768}")
        both("s_waitcnt lgkmcnt(0)")
        for i in range(8):
            both(f"v_add_f32 v{B0+i}, v{B0+i}, v{B0+8+i}"); both(f"v_add_f32 v{B0+16+i}, v{B0+16+i}, v{B0+24+i}")
        for i in range(8): both(f"v_add_f32 v{B0+i}, v{B0+i}, v{B0+16+i}")
        for i in range(4):
            rr = RES + 4*j + i
            both(f"v_lshlrev_b32 v{B0+8+2*i}, 16, v{rr}"); both(f"v_and_b32 v{B0+9+2*i}, 0xffff0000, v{rr}")
        for i in range(8): both(f"v_fmac_f32 v{B0+8+i}, v{B0+i}, v{GV+i}")
        for i in range(4): both(f"v_cvt_pk_bf16_f32 v{B0+16+i}, v{B0+8+2*i}, v{B0+9+2*i}")
        both(f"buffer_store_dwordx4 {vr(B0+16, 4)}, v{vRO}, s[{SRD_O}:{SRD_O+3}], 0 offen{STF}")
        if j < 3: both(f"v_add_u32 v{vRO}, {8*2048}, v{vRO}")
    if stamps:
        both("s_waitcnt vmcnt(0)"); stamp(both, 3); stamp_store(both, 4, sWS, vtmp=200, kidx=(3 if KS_TOTAL == 128 else 6)); both("s_waitcnt vmcnt(0)")
    a.label(f"L_{name}_end"); a("s_endpgm")
    return a, [lin]

def gen_oproj(stamps=False):
    return gen_sk("oproj_kernel", 128, "wo", WS_OF, 16 << 20, ("arg", "x"), ("ws", WS_X2), 2, 1.0, stamps)
def gen_down(stamps=False):
    return gen_sk("down_kernel", 112, "wd", WS_HHF, 128*112*1024, ("ws", WS_X2), ("arg", "out"), 5, 1.0/LOG2E, stamps)

if __name__ == "__main__":
    for f in (gen_oproj, gen_down):
        a, lins = f()
        e = []
        for l in lins: e += check(l, "sk")
        print("errors:", len(e), "instrs:", len(a.lines))
```

```python
from common import *

def gen_prep(name="prep_kernel", stamps=False):
    a = Asm()
    a(kernel_header(name))
    a("s_cmp_ge_u32 s2, 256"); a(f"s_cbranch_scc1 L_{name}_end")
    a(f"s_load_dwordx2 s[4:5], s[0:1], {KA['ws']}")
    if stamps: stamp(a, 0)
    def fin():
        if stamps:
            a("s_mov_b64 exec, -1"); a("s_waitcnt vmcnt(0)"); stamp(a, 1); stamp_store(a, 2, 4, vtmp=100, kidx=0); a("s_waitcnt vmcnt(0)")
        a("s_endpgm")
    a("v_lshrrev_b32 v4, 6, v0"); a("v_and_b32 v1, 63, v0"); a("v_readfirstlane_b32 s24, v4")
    if PREFETCH:
        a(f"s_load_dwordx2 s[32:33], s[0:1], {KA['x']}"); a(f"s_load_dwordx2 s[36:37], s[0:1], {KA['wq']}")
    def pf_all(d=102):
        srd(a, 32, 32, 0, 4 << 20); srd(a, 36, 36, 0, 8 << 20)
        a("s_lshl_b32 s40, s2, 3"); a("s_add_u32 s40, s40, s24"); a("s_lshl_b32 s41, s40, 12"); a("s_lshl_b32 s40, s40, 11")
        a("v_lshlrev_b32 v100, 5, v1"); a("v_lshlrev_b32 v101, 6, v1")
        a(f"buffer_load_dword v{d}, v100, s[32:35], s40 offen")
        a(f"buffer_load_dword v{d+1}, v101, s[36:39], s41 offen")
    a("s_cmp_ge_u32 s2, 192"); a(f"s_cbranch_scc1 L_{name}_kv")
    a(f"s_load_dwordx2 s[6:7], s[0:1], {KA['c']}"); a(f"s_load_dwordx2 s[8:9], s[0:1], {KA['wmod']}")
    a("s_mul_hi_u32 s26, s2, 0x5555556")
    a("s_mul_i32 s27, s26, 48"); a("s_sub_u32 s25, s2, s27")
    a("s_waitcnt lgkmcnt(0)")
    srd(a, 12, 6, 0, 2048); srd(a, 16, 8, 0, 1024*12288); srd(a, 20, 4, WS_MODP, 4*6144*4)
    a("s_lshl_b32 s27, s26, 8"); a("s_lshl_b32 s28, s24, 5"); a("s_add_u32 s27, s27, s28")
    a("v_lshrrev_b32 v2, 4, v1"); a("v_lshl_add_u32 v3, v2, 3, s27")
    a("v_lshlrev_b32 v4, 1, v3")
    a("buffer_load_dwordx4 v[8:11], v4, s[12:15], 0 offen")
    a("s_mov_b32 s28, 12288"); a("v_mul_lo_u32 v5, v3, s28")
    a("v_and_b32 v6, 15, v1"); a("v_lshl_add_u32 v5, v6, 4, v5"); a("s_lshl_b32 s28, s25, 8"); a("v_add_u32 v5, s28, v5")
    for i in range(8):
        a(f"buffer_load_dwordx4 v[{32+4*i}:{35+4*i}], v5, s[16:19], 0 offen")
        if i < 7: a("v_add_u32 v5, 12288, v5")
    if PREFETCH: pf_all()
    np2 = 2 if PREFETCH else 0
    a(f"s_waitcnt vmcnt({8 + np2})")
    for i in range(4):
        a(f"v_lshlrev_b32 v{12+2*i}, 16, v{8+i}"); a(f"v_and_b32 v{13+2*i}, 0xffff0000, v{8+i}")
    a(f"s_mov_b32 s28, {hex(f32bits(-LOG2E))}")
    for i in range(8): a(f"v_mul_f32 v{20+i}, s28, v{12+i}")
    for i in range(8): a(f"v_exp_f32 v{20+i}, v{20+i}")
    for i in range(8): a(f"v_add_f32 v{20+i}, 1.0, v{20+i}")
    for i in range(8): a(f"v_rcp_f32 v{20+i}, v{20+i}")
    for i in range(8): a(f"v_mul_f32 v{12+i}, v{12+i}, v{20+i}")
    for i in range(4): a(f"v_cvt_pk_bf16_f32 v{20+i}, v{12+2*i}, v{13+2*i}")
    for i in range(4):
        a(f"v_lshlrev_b32 v{12+2*i}, 16, v{20+i}"); a(f"v_and_b32 v{13+2*i}, 0xffff0000, v{20+i}")
    for j in range(8): a(f"v_mov_b32 v{64+j}, 0")
    for i in range(8):
        a(f"s_waitcnt vmcnt({7-i+np2})")
        for q in range(4):
            r = 32 + 4*i + q
            a(f"v_lshlrev_b32 v28, 16, v{r}"); a(f"v_and_b32 v29, 0xffff0000, v{r}")
            a(f"v_fmac_f32 v{64+2*q}, v28, v{12+i}"); a(f"v_fmac_f32 v{65+2*q}, v29, v{12+i}")
    a("s_lshl_b32 s28, s24, 2"); a("v_add_u32 v2, s28, v2"); a("v_lshlrev_b32 v2, 9, v2"); a("v_lshl_add_u32 v2, v6, 5, v2")
    a("ds_write_b128 v2, v[64:67]"); a("ds_write_b128 v2, v[68:71] offset:16")
    a("s_waitcnt lgkmcnt(0)"); a("s_barrier")
    a("v_cmp_gt_u32 vcc, 128, v0"); a("s_and_saveexec_b64 s[30:31], vcc"); a(f"s_cbranch_execz L_{name}_end")
    a("v_lshlrev_b32 v2, 2, v0")
    for gi in range(32): a(f"ds_read_b32 v{32+gi}, v2 offset:{gi*512}")
    a("s_waitcnt lgkmcnt(0)")
    for st in (16, 8, 4, 2, 1):
        for i in range(st): a(f"v_add_f32 v{32+i}, v{32+i}, v{32+st+i}")
    a("s_mul_i32 s28, s26, 24576"); a("s_lshl_b32 s29, s25, 9"); a("s_add_u32 s28, s28, s29")
    a("buffer_store_dword v32, v2, s[20:23], s28 offen")
    fin()
    a.label(f"L_{name}_kv")
    a("s_sub_u32 s25, s2, 192"); a("s_lshl_b32 s25, s25, 3"); a("s_add_u32 s25, s25, s24")
    a(f"s_load_dwordx2 s[6:7], s[0:1], {KA['k']}"); a(f"s_load_dwordx2 s[8:9], s[0:1], {KA['v']}")
    a("s_waitcnt lgkmcnt(0)")
    a("s_cmp_ge_u32 s25, 256")
    a("s_cselect_b64 s[12:13], s[8:9], s[6:7]"); a("s_mov_b32 s14, 0x200000"); a("s_mov_b32 s15, 0x20000")
    srd(a, 16, 4, WS_KV, 4 << 20)
    a("s_and_b32 s26, s25, 255"); a("s_lshl_b32 s26, s26, 13")
    a("s_lshl_b32 s29, s25, 13")
    a("v_lshlrev_b32 v3, 4, v1")
    a("s_lshl_b32 s27, s24, 13")
    for i in range(8):
        if i == 4: a("s_add_u32 s28, s26, 4096")
        if i % 4 == 0: a(f"s_add_u32 m0, s27, {i*1024}"); a("s_nop 0")
        a(f"buffer_load_dwordx4 v3, s[12:15], s{26 if i < 4 else 28} offen offset:{(i%4)*1024} lds")
    if PREFETCH: pf_all(104)
    npf = 2 if PREFETCH else 0
    a("s_cmp_ge_u32 s25, 256"); a(f"s_cbranch_scc1 L_{name}_v")
    a("v_and_b32 v4, 15, v1"); a("v_lshlrev_b32 v4, 8, v4"); a("v_lshrrev_b32 v5, 4, v1"); a("v_lshl_add_u32 v4, v5, 3, v4"); a("v_add_u32 v4, s27, v4")
    a(f"s_waitcnt vmcnt({npf})")
    for kb in range(2):
        for s_ in range(4):
            r = 8 + 4*(4*kb + s_)
            a(f"ds_read_b64 v[{r}:{r+1}], v4 offset:{kb*4096 + s_*64}"); a(f"ds_read_b64 v[{r+2}:{r+3}], v4 offset:{kb*4096 + s_*64 + 32}")
        a("s_waitcnt lgkmcnt(0)")
    a(f"s_branch L_{name}_st")
    a.label(f"L_{name}_v")
    a("v_lshrrev_b32 v4, 4, v1"); a("v_bfe_u32 v5, v1, 2, 2"); a("v_lshl_add_u32 v4, v4, 2, v5"); a("v_lshlrev_b32 v4, 8, v4")
    a("v_and_b32 v5, 3, v1"); a("v_lshl_add_u32 v4, v5, 3, v4"); a("v_add_u32 v4, s27, v4")
    a(f"s_waitcnt vmcnt({npf})")
    for db in range(8):
        a(f"ds_read_b64_tr_b16 v[{8+4*db}:{9+4*db}], v4 offset:{db*32}")
        a(f"ds_read_b64_tr_b16 v[{10+4*db}:{11+4*db}], v4 offset:{db*32 + 4096}")
        if db == 3: a("s_waitcnt lgkmcnt(0)")
    a("s_waitcnt lgkmcnt(0)")
    a.label(f"L_{name}_st")
    for db in range(8):
        if db == 4: a("s_add_u32 s29, s29, 4096")
        a(f"buffer_store_dwordx4 v[{8+4*db}:{11+4*db}], v3, s[16:19], s29 offen offset:{(db%4)*1024}")
    fin()
    a.label(f"L_{name}_end"); a("s_endpgm")
    return a

def gen_ln(name, first, stamps=False):
    sc = LOG2E / (128.0 ** 0.5) if first else LOG2E
    ish, isc = (0, 1) if first else (3, 4)
    a = Asm()
    a(kernel_header(name))
    a("s_cmp_ge_u32 s2, 256"); a(f"s_cbranch_scc1 L_{name}_end")
    a(f"s_load_dwordx2 s[4:5], s[0:1], {KA['ws']}")
    a(f"s_load_dwordx2 s[6:7], s[0:1], {KA['x']}")
    if stamps: stamp(a, 0)
    a("v_lshrrev_b32 v4, 6, v0"); a("v_and_b32 v1, 63, v0"); a("v_readfirstlane_b32 s24, v4")
    a("s_waitcnt lgkmcnt(0)")
    srd(a, 8, 6, 0, 4 << 20)
    if not first:
        srd(a, 28, 4, WS_OP, 8 << 20); srd(a, 32, 4, WS_X2, 4 << 20); srd(a, 36, 4, WS_FLAG, 256*128)
        a("s_lshl_b32 s26, s2, 7"); a("v_mov_b32 v7, 0"); a("v_cmp_eq_u32 vcc, 0, v0"); a("s_and_saveexec_b64 s[40:41], vcc")
        a("buffer_store_dword v7, v7, s[36:39], s26 offen"); a("s_mov_b64 exec, s[40:41]")
    srd(a, 12, 4, WS_H1F if first else WS_H2F, 4 << 20)
    if first: srd(a, 16, 4, WS_MODP, 4*6144*4)
    else: srd(a, 16, 4, WS_MOD, 6144*4)
    srd(a, 20, 4, WS_MOD, 6144*4)
    a("s_lshl_b32 s25, s2, 3"); a("s_lshl_b32 s26, s24, 1"); a("s_add_u32 s25, s25, s26")
    a("v_lshrrev_b32 v2, 5, v1"); a("v_add_u32 v2, s25, v2")
    a("v_and_b32 v3, 31, v1")
    a("v_lshlrev_b32 v5, 11, v2"); a("v_lshl_add_u32 v5, v3, 4, v5")
    for i in range(4): a(f"buffer_load_dwordx4 v[{32+4*i}:{35+4*i}], v5, s[8:11], 0 offen offset:{i*512}")
    if not first:
        a(f"s_mov_b32 s26, {4 << 20}")
        for i in range(4): a(f"buffer_load_dwordx4 v[{132+4*i}:{135+4*i}], v5, s[28:31], 0 offen offset:{i*512}")
        for i in range(4): a(f"buffer_load_dwordx4 v[{148+4*i}:{151+4*i}], v5, s[28:31], s26 offen offset:{i*512}")
    a("v_lshlrev_b32 v6, 4, v0")
    np_ = 4 if first else 1
    for p in range(np_):
        a(f"s_mov_b32 s26, {p*24576 + ish*4096}"); a(f"s_mov_b32 s27, {p*24576 + isc*4096}")
        a(f"buffer_load_dwordx4 v[{64+8*p}:{67+8*p}], v6, s[16:19], s26 offen")
        a(f"buffer_load_dwordx4 v[{68+8*p}:{71+8*p}], v6, s[16:19], s27 offen")
    if not first:
        a(f"s_mov_b32 s26, {2*4096}")
        a("buffer_load_dwordx4 v[76:79], v6, s[16:19], s26 offen")
    if first:
        a("s_cmp_ge_u32 s2, 4"); a(f"s_cbranch_scc1 L_{name}_nofin")
        a("s_add_u32 s28, s2, 2"); a("s_lshl_b32 s28, s28, 12")
        for p in range(4):
            a(f"s_add_u32 s26, s28, {p*24576}")
            a(f"buffer_load_dwordx4 v[{100+4*p}:{103+4*p}], v6, s[16:19], s26 offen")
        a("s_waitcnt vmcnt(0)")
        for i in range(4):
            a(f"v_add_f32 v{100+i}, v{100+i}, v{104+i}"); a(f"v_add_f32 v{108+i}, v{108+i}, v{112+i}"); a(f"v_add_f32 v{100+i}, v{100+i}, v{108+i}")
        a("v_cvt_pk_bf16_f32 v104, v100, v101"); a("v_cvt_pk_bf16_f32 v105, v102, v103")
        a("v_lshlrev_b32 v100, 16, v104"); a("v_and_b32 v101, 0xffff0000, v104"); a("v_lshlrev_b32 v102, 16, v105"); a("v_and_b32 v103, 0xffff0000, v105")
        a("buffer_store_dwordx4 v[100:103], v6, s[20:23], s28 offen")
        a.label(f"L_{name}_nofin")
    a("s_waitcnt vmcnt(0)")
    if first:
        for i in range(8):
            a(f"v_add_f32 v{64+i}, v{64+i}, v{72+i}"); a(f"v_add_f32 v{80+i}, v{80+i}, v{88+i}"); a(f"v_add_f32 v{64+i}, v{64+i}, v{80+i}")
        for i in range(4): a(f"v_cvt_pk_bf16_f32 v{72+i}, v{64+2*i}, v{65+2*i}")
        for i in range(4):
            a(f"v_lshlrev_b32 v{64+2*i}, 16, v{72+i}"); a(f"v_and_b32 v{65+2*i}, 0xffff0000, v{72+i}")
    for i in range(4): a(f"v_add_f32 v{68+i}, 1.0, v{68+i}")
    a("v_cvt_pk_bf16_f32 v72, v68, v69"); a("v_cvt_pk_bf16_f32 v73, v70, v71")
    a("v_lshlrev_b32 v68, 16, v72"); a("v_and_b32 v69, 0xffff0000, v72"); a("v_lshlrev_b32 v70, 16, v73"); a("v_and_b32 v71, 0xffff0000, v73")
    a(f"s_mov_b32 s26, {hex(f32bits(sc))}")
    for i in range(8): a(f"v_mul_f32 v{64+i}, s26, v{64+i}")
    if not first: a("ds_write_b128 v6, v[76:79] offset:8192")
    if not first: pass
    a("ds_write_b128 v6, v[64:67]"); a("ds_write_b128 v6, v[68:71] offset:4096")
    if not first:
        a("v_lshlrev_b32 v13, 5, v3")
        a("s_waitcnt lgkmcnt(0)"); a("s_barrier")
        for i in range(4):
            a(f"ds_read_b128 v[64:67], v13 offset:{8192+i*1024}"); a(f"ds_read_b128 v[68:71], v13 offset:{8192+i*1024+16}")
            for j in range(4):
                p0, p1, xr = 132+4*i+j, 148+4*i+j, 32+4*i+j
                a(f"v_lshlrev_b32 v16, 16, v{p0}"); a(f"v_and_b32 v17, 0xffff0000, v{p0}")
                a(f"v_lshlrev_b32 v18, 16, v{p1}"); a(f"v_and_b32 v19, 0xffff0000, v{p1}")
                a("v_add_f32 v16, v16, v18"); a("v_add_f32 v17, v17, v19")
                a(f"v_lshlrev_b32 v18, 16, v{xr}"); a(f"v_and_b32 v19, 0xffff0000, v{xr}")
                if j == 0: a("s_waitcnt lgkmcnt(0)")
                a(f"v_fmac_f32 v18, v16, v{64+2*j}"); a(f"v_fmac_f32 v19, v17, v{65+2*j}")
                a(f"v_cvt_pk_bf16_f32 v{xr}, v18, v19")
            a(f"buffer_store_dwordx4 v[{32+4*i}:{35+4*i}], v5, s[32:35], 0 offen offset:{i*512}{STF}")
    for i in range(16):
        a(f"v_lshlrev_b32 v{100+2*i}, 16, v{32+i}"); a(f"v_and_b32 v{101+2*i}, 0xffff0000, v{32+i}")
    def allreduce32(r, t):
        for sh in (8, 4, 2, 1):
            a("s_nop 1"); a(f"v_add_f32_dpp v{r}, v{r}, v{r} row_ror:{sh} row_mask:0xf bank_mask:0xf")
        a(f"v_mov_b32 v{t}, v{r}"); a("s_nop 1"); a(f"v_permlane16_swap_b32 v{r}, v{t}"); a(f"v_add_f32 v{r}, v{r}, v{t}")
    a("v_add_f32 v8, v100, v101")
    for i in range(2, 32): a(f"v_add_f32 v8, v8, v{100+i}")
    allreduce32(8, 9)
    a(f"v_mul_f32 v8, {hex(f32bits(1.0/1024))}, v8")
    for i in range(32): a(f"v_sub_f32 v{100+i}, v{100+i}, v8")
    a("v_mul_f32 v10, v100, v100")
    for i in range(1, 32): a(f"v_fmac_f32 v10, v{100+i}, v{100+i}")
    allreduce32(10, 9)
    a(f"v_mov_b32 v11, {hex(f32bits(1e-5))}"); a(f"v_fmac_f32 v11, {hex(f32bits(1.0/1024))}, v10")
    a("v_rsq_f32 v11, v11")
    a("s_waitcnt lgkmcnt(0)"); a("s_barrier")
    a("v_lshrrev_b32 v12, 4, v2"); a("v_lshlrev_b32 v12, 15, v12"); a("v_lshrrev_b32 v13, 2, v3"); a("v_lshl_add_u32 v12, v13, 10, v12")
    a("v_and_b32 v13, 3, v3"); a("v_lshlrev_b32 v13, 4, v13"); a("v_and_b32 v14, 15, v2"); a("v_add_u32 v13, v13, v14"); a("v_lshl_add_u32 v12, v13, 4, v12")
    a("v_lshlrev_b32 v13, 5, v3")
    for i in range(4):
        a(f"ds_read_b128 v[64:67], v13 offset:{i*1024}"); a(f"ds_read_b128 v[68:71], v13 offset:{i*1024+16}")
        a(f"ds_read_b128 v[72:75], v13 offset:{4096+i*1024}"); a(f"ds_read_b128 v[76:79], v13 offset:{4096+i*1024+16}")
        for j in range(8): a(f"v_mul_f32 v{100+8*i+j}, v{100+8*i+j}, v11")
        a("s_waitcnt lgkmcnt(0)")
        for j in range(8): a(f"v_fma_f32 v{100+8*i+j}, v{100+8*i+j}, v{72+j}, v{64+j}")
        for j in range(4): a(f"v_cvt_pk_bf16_f32 v{80+4*i+j}, v{100+8*i+2*j}, v{101+8*i+2*j}")
        a(f"s_mov_b32 s26, {i*8192}")
        a(f"buffer_store_dwordx4 v[{80+4*i}:{83+4*i}], v12, s[12:15], s26 offen{STF}")
    if stamps:
        a("s_waitcnt vmcnt(0)"); stamp(a, 1); stamp_store(a, 2, 4, vtmp=100, kidx=(1 if first else 4)); a("s_waitcnt vmcnt(0)")
    a.label(f"L_{name}_end"); a("s_endpgm")
    return a

if __name__ == "__main__":
    for nm, k in (("prep", gen_prep()), ("ln1", gen_ln("ln1_kernel", True)), ("ln2", gen_ln("ln2_kernel", False))):
        e = check(k.lines, nm, lds_model=False)
        print(nm, "errors:", len(e), "instrs:", len(k.lines))
```

```python
import sys
from common import *
import os
import build as B, k_attn, k_gu, k_sk, k_small, k_g128
G128 = os.environ.get('G128', '1') == '1'

def kernels(stamps=False):
    errs = []
    prep = k_small.gen_prep(stamps=stamps); ln1 = k_small.gen_ln("ln1_kernel", True, stamps); ln2 = k_small.gen_ln("ln2_kernel", False, stamps)
    for k in (prep, ln1, ln2): errs += check(k.lines, "small", lds_model=False)
    at, lin, slows = k_attn.gen_attn(stamps=stamps)
    errs += check(lin, "attn")
    for s in slows: errs += check(s, "slow")
    gu, lins = k_gu.gen_gu(stamps=stamps)
    for l in lins: errs += check(l, "gu")
    op, lins = (k_g128 if G128 else k_sk).gen_oproj(stamps=stamps)
    for l in lins: errs += check(l, "oproj")
    dn, lins = (k_g128 if G128 else k_sk).gen_down(stamps=stamps)
    for l in lins: errs += check(l, "down")
    assert not errs, errs[:5]
    return [
        dict(name="prep_kernel", asm=prep, grid=256, block=512, lds=65536, vgprs=128, accum=128),
        dict(name="ln1_kernel", asm=ln1, grid=256, block=256, lds=8192, vgprs=136, accum=136),
        dict(name="attn_kernel", asm=at, grid=256, block=256, lds=131072, vgprs=512, accum=256),
        dict(name="oproj_kernel", asm=op, grid=256, block=256, lds=131072, vgprs=512, accum=256),
        dict(name="ln2_kernel", asm=ln2, grid=256, block=256, lds=12288, vgprs=168, accum=168),
        dict(name="gu_kernel", asm=gu, grid=256, block=256, lds=131072, vgprs=512, accum=256),
        dict(name="down_kernel", asm=dn, grid=256, block=256, lds=131072, vgprs=512, accum=256),
    ]

if __name__ == "__main__":
    out = sys.argv[1] if len(sys.argv) > 1 else f"cdna_kernels/{NAME}.s"
    txt = B.assemble(kernels())
    open(out, "w").write(txt)
    print("wrote", out, len(txt), "bytes")
```

```python
from asmlib import *
NAME = "adaLN_cond__gqa_block_cached__glu_gated_glu__prompt"
KA = dict(x=0, k=8, v=16, wq=24, wo=32, bx=40, wg=48, wu=56, wd=64, c=72, wmod=80, out=88, dbg=96, ws=104)
WS_MODP = 0x0
WS_MOD  = 0x20000
WS_H1F  = 0x100000
WS_KV   = 0x500000
WS_OF   = 0x1000000
WS_X2   = 0x2000000
WS_H2F  = 0x2400000
WS_HHF  = 0x2800000
WS_EX   = 0x4000000
WS_OP   = 0x5000000
WS_FLAG = 0x5800000
LOG2E = 1.4426950408889634

def f32bits(x):
    import struct
    return struct.unpack("<I", struct.pack("<f", x))[0]

def srd(a, s, base_pair, off, size):
    if off:
        a(f"s_add_u32 s{s}, s{base_pair}, {hex(off)}")
        a(f"s_addc_u32 s{s+1}, s{base_pair+1}, 0")
    else:
        a(f"s_mov_b32 s{s}, s{base_pair}")
        a(f"s_mov_b32 s{s+1}, s{base_pair+1}")
    a(f"s_mov_b32 s{s+2}, {hex(size)}")
    a(f"s_mov_b32 s{s+3}, 0x20000")

def kernel_header(name):
    return f".globl {name}\n.p2align 8\n.type {name},@function\n{name}:"

def kernel_desc(name, vgprs, accum, sgprs=102):
    return f""".p2align 6
.amdhsa_kernel {name}
  .amdhsa_next_free_vgpr {vgprs}
  .amdhsa_next_free_sgpr {sgprs}
  .amdhsa_accum_offset {accum}
  .amdhsa_group_segment_fixed_size 0
  .amdhsa_kernarg_size 112
  .amdhsa_user_sgpr_count 2
  .amdhsa_user_sgpr_kernarg_segment_ptr 1
  .amdhsa_system_sgpr_workgroup_id_x 1
.end_amdhsa_kernel"""

def interleave(a, mfmas, gaps, pre=None):
    for i, m in enumerate(mfmas):
        if pre and pre.get(i):
            for x in pre[i]: a(x)
        a(m if m is not None else "s_nop 0")
        for x in gaps[i]: a(x)

WS_STAMP = 0x3800000
sSTAMP = 60
def stamp(emit, i):
    emit(f"s_memtime s[{sSTAMP+4*i}:{sSTAMP+4*i+1}]")
    emit(f"s_memrealtime s[{sSTAMP+4*i+2}:{sSTAMP+4*i+3}]")
    emit("s_waitcnt lgkmcnt(0)")
def stamp_store(emit, n, ws_pair, vtmp=200, kidx=0):
    emit(f"s_add_u32 s96, s{ws_pair}, {hex(WS_STAMP + kidx*65536)}"); emit(f"s_addc_u32 s97, s{ws_pair+1}, 0")
    emit("s_mov_b32 s98, 0x100000"); emit("s_mov_b32 s99, 0x20000")
    emit(f"s_lshl_b32 s95, s2, 6")
    for i in range(n):
        emit(f"v_mov_b32 v{vtmp+2*i}, s{sSTAMP+4*i}"); emit(f"v_mov_b32 v{vtmp+2*i+1}, s{sSTAMP+4*i+2}")
    emit(f"v_mov_b32 v{vtmp+2*n}, 0")
    for i in range(n):
        emit(f"buffer_store_dwordx2 v[{vtmp+2*i}:{vtmp+2*i+1}], v{vtmp+2*n}, s[96:99], s95 offen offset:{8*i}")

import os
STF = os.environ.get("STF", "")
PREFETCH = os.environ.get("PF", "1") == "1"
PF_WQ_LN1 = os.environ.get("PFWQ", "0") == "1"

sF_SRD = 92
sF_SIG = 90
sF_WAIT = 91
sF_WAVE = 100
F_S1, F_S2, F_S3, F_S4 = 256, 272, 288, 296
F_LINES = 312
F_SPIN = 1 << 18
F_PTR = dict(wo=74, wg=76, wu=78, wd=80, x=82, out=84)
STAMP_SKIP = os.environ.get('SSKIP', '').split(',') if os.environ.get('SSKIP') else []
LDF = " sc1"
class Fuse:
    def __init__(self, stamps=False):
        self.a = Asm(); self.lin = []; self.stamps = stamps; self.nst = 0; self.uid = 0; self.names = []
    def both(self, x):
        n = len(self.a.lines); self.a(x); self.lin.extend(self.a.lines[n:])
    def stamp(self, tag=""):
        if not self.stamps: return
        if STAMP_SKIP and any(t in tag for t in STAMP_SKIP): return
        i = self.nst; self.nst += 1; self.names.append(tag)
        self.both("s_memrealtime s[98:99]"); self.both("s_waitcnt lgkmcnt(0)")
        self.both(f"s_mov_b32 s{50+i if False else 62+i}, s98")
        assert 62 + i < 74
    def ptr(self, dst, key):
        self.both(f"s_mov_b64 s[{dst}:{dst+1}], s[{F_PTR[key]}:{F_PTR[key]+1}]")
    def load_ptrs(self):
        for k, r in F_PTR.items(): self.both(f"s_load_dwordx2 s[{r}:{r+1}], s[0:1], {KA[k]}")
    def handoff(self, target):
        a, both = self.a, self.both
        self.uid += 1; u = self.uid
        both("s_waitcnt vmcnt(0)")
        both("s_barrier")
        a(f"s_cmp_lg_u32 s{sF_WAVE}, 0"); a(f"s_cbranch_scc1 L_fz_w{u}")
        a("s_mov_b64 s[88:89], exec"); a("s_mov_b64 exec, 1")
        a(f"v_mov_b32 v250, 1"); a(f"v_mov_b32 v251, s{sF_SIG}"); a(f"v_mov_b32 v252, s{sF_WAIT}")
        a(f"buffer_atomic_add v250, v251, s[{sF_SRD}:{sF_SRD+3}], 0 offen")
        a(f"s_mov_b32 s87, {F_SPIN}")
        a.label(f"L_fz_p{u}")
        a(f"buffer_load_dword v253, v252, s[{sF_SRD}:{sF_SRD+3}], 0 offen sc1")
        a("s_waitcnt vmcnt(0)")
        a("v_readfirstlane_b32 s86, v253")
        a(f"s_cmp_ge_u32 s86, {target}"); a(f"s_cbranch_scc1 L_fz_g{u}")
        a("s_sub_u32 s87, s87, 1"); a("s_cmp_lg_u32 s87, 0"); a(f"s_cbranch_scc1 L_fz_p{u}")
        a.label(f"L_fz_g{u}")
        a("s_mov_b64 exec, s[88:89]")
        a.label(f"L_fz_w{u}")
```

```python
from common import *

vLANE16 = 1; vCUR = 2; vNXT = 3; vW = 4; vB = 5
vA = 9
QF = 20
S = 84
P = 116
E = 148
NM = 156
LT = 172
LR = 176
TMP = 180
ACC = 84
O = 0
BR = 128
AF = 192
VF = 224
sWS = 4; sWQ = 6
SRD_W = 8; SRD_H = 12; SRD_KV = 16; SRD_O = 20
sWAVE = 24; sHEAD = 25; sQB = 26; sKVH = 27
sWOFF = 28; sWOFF2 = 29; sWM0 = 30; sBOFF = 31; sCNT = 32
sKO = 33; sVO = 34; sMN = 35; sMC = 36; sTH = 37; sTMP = 38
sRET = 40
SRD_PF = 44
sPFA = 42; sPFB = 43
vPF = 17; vPFD = 212
OFFSET = 24.0
THRESH = 2.0**60
WBASE = 65536
CFG = dict(vgaps=[[3, 6, 11, 15, 19, 22, 27, 31], [3, 6, 11, 15, 19, 22, 27, 31], [3, 6, 11, 15, 19, 22, 25, 27], [3, 6, 11, 15, 19, 22, 27, 31]],
           kgaps=[35, 38, 43, 47, 51, 54, 59, 63],
           dgaps=[[2, 10, 18, 26], [2, 10, 18, 26], [42, 46, 50, 58], [2, 10, 18, 26]], bargap=33, ld=4)

def mf(d, a_, b, c): return f"v_mfma_f32_16x16x32_bf16 {d}, {a_}, {b}, {c}"

class VmSim:
    def __init__(self): self.q = []
    def issue(self, tag): self.q.append(tag)
    def wait_for(self, tag):
        idx = max(i for i, t in enumerate(self.q) if t == tag)
        n = len(self.q) - 1 - idx
        self.q = self.q[idx+1:]
        return n

def kv_group(kind, tag, cur, lo):
    sm = sMC if cur else sMN
    so = sKO if kind == "K" else sVO
    ldsoff = (0 if kind == "K" else 32768) + (0 if lo else 4096)
    setup = [f"s_add_u32 m0, s{sm}, {ldsoff}"]
    if not lo: setup.append(f"s_add_u32 s{sTMP}, s{so}, 4096")
    r = so if lo else sTMP
    dm = [f"buffer_load_dwordx4 v{vLANE16}, s[{SRD_KV}:{SRD_KV+3}], s{r} offen offset:{i*1024} lds ; @dma={tag}" for i in range(4)]
    post = [] if lo else [f"s_add_u32 s{so}, s{so}, 32768"]
    return setup, dm, post

def qproj_step(s, nsteps=32, D=6, DB=3):
    mfm, gaps, pre = [], [[] for _ in range(32)], {}
    bslot = s % 4
    for ft in range(8):
        for tb in range(4):
            d = vr(ACC + 16*ft + 4*tb, 4)
            mfm.append(mf(d, ar(AF + 4*ft, 4), ar(BR + 16*bslot + 4*tb, 4), d if s > 0 else "0"))
    def ard(ft, st, half):
        off = (st % 8) * 8192 + half * 1024
        return f"ds_read_b64_tr_b16 {ar(AF + 4*ft + 2*half, 2)}, v{vA+ft} offset:{off} ; @rd=W{st}"
    gaps[0].append(ard(7, s, 0)); gaps[1].append(ard(7, s, 1))
    if s + 1 < nsteps:
        for ft in range(7):
            gaps[4*ft + 4].append(ard(ft, s + 1, 0)); gaps[4*ft + 5].append(ard(ft, s + 1, 1))
    if s + D < nsteps:
        sl = (s + D) % 8
        gaps[2].append(f"s_add_u32 m0, s{sWM0}, {sl*8192}")
        gaps[3].append(f"buffer_load_dwordx4 v{vW}, s[{SRD_W}:{SRD_W+3}], s{sWOFF} offen lds ; @dma=W{s+D}")
        gaps[6].append(f"s_add_u32 s{sWOFF2}, s{sWOFF}, {4*8192}")
        gaps[10].append(f"s_add_u32 m0, s{sWM0}, {sl*8192 + 1024}")
        gaps[11].append(f"buffer_load_dwordx4 v{vW}, s[{SRD_W}:{SRD_W+3}], s{sWOFF2} offen lds ; @dma=W{s+D}")
        gaps[14].append(f"s_add_u32 s{sWOFF}, s{sWOFF}, {32*8192}")
    if s + DB < nsteps:
        bs = (s + DB) % 4
        for tb in range(4):
            gaps[15 + 4*tb].append(f"buffer_load_dwordx4 {ar(BR + 16*bs + 4*tb, 4)}, v{vB+tb}, s[{SRD_H}:{SRD_H+3}], s{sBOFF} offen ; @b=B{s+DB}")
        gaps[30].append(f"s_add_u32 s{sBOFF}, s{sBOFF}, 1024")
    if 26 <= s <= 29:
        kind, lo = [("K", True), ("K", False), ("V", True), ("V", False)][s - 26]
        su, dm, po = kv_group(kind, f"{kind}0{'lo' if lo else 'hi'}", True, lo)
        gaps[2] += su
        for g, x in zip((3, 7, 11, 14), dm): gaps[g].append(x)
        gaps[18] += po
    return mfm, gaps

def sm_stream(par):
    it = []
    for qb in range(4):
        g0 = 22 + 16*qb
        Pq = P + 16*par + 4*qb
        for i in range(8):
            it.append((g0 + 2*i, f"v_exp_f32 v{E+i}, v{S + 8*qb + i}"))
        o = lambda i: g0 + 2*i + 1
        it.append((o(1), f"v_add_f32 v{LT+qb}, v{E}, v{E+1}"))
        it.append((o(1), f"v_cvt_pk_bf16_f32 v{Pq}, v{E}, v{E+1}"))
        for i in range(2, 8):
            it.append((o(i), f"v_add_f32 v{LT+qb}, v{LT+qb}, v{E+i}"))
            if i in (3, 5): it.append((o(i), f"v_cvt_pk_bf16_f32 v{Pq + i//2}, v{E+i-1}, v{E+i}"))
        it.append((o(7), f"v_cmp_lt_f32 vcc, s{sTH}, v{LT+qb}"))
        it.append((o(8), ("BR", qb, par)))
        it.append((o(8), f"v_cvt_pk_bf16_f32 v{Pq+3}, v{E+6}, v{E+7}"))
        it.append((o(8), f"v_add_f32 v{LR+qb}, v{LR+qb}, v{LT+qb}"))
    return it

STUBS = []
def slow_path(name, qb, par):
    a = Asm()
    Sq = S + 8*qb; Pq = P + 16*par + 4*qb; t0, t1, dl, f = TMP, TMP+1, TMP+2, TMP+3; X = TMP + 4
    a.label(f"L_{name}_slow_{qb}_{par}")
    a("s_nop 7"); a("s_nop 3")
    a(f"v_max3_f32 v{t0}, v{Sq}, v{Sq+1}, v{Sq+2}"); a(f"v_max3_f32 v{t0}, v{t0}, v{Sq+3}, v{Sq+4}")
    a(f"v_max3_f32 v{t0}, v{t0}, v{Sq+5}, v{Sq+6}"); a(f"v_max_f32 v{t0}, v{t0}, v{Sq+7}")
    a(f"v_mov_b32 v{t1}, v{t0}"); a("s_nop 1"); a(f"v_permlane16_swap_b32 v{t0}, v{t1}"); a(f"v_max_f32 v{t0}, v{t0}, v{t1}")
    a(f"v_mov_b32 v{t1}, v{t0}"); a("s_nop 1"); a(f"v_permlane32_swap_b32 v{t0}, v{t1}"); a(f"v_max_f32 v{t0}, v{t0}, v{t1}")
    a(f"v_ceil_f32 v{dl}, v{t0}"); a(f"v_add_f32 v{dl}, {hex(f32bits(OFFSET))}, v{dl}"); a(f"v_max_f32 v{dl}, 0, v{dl}")
    a(f"v_cvt_i32_f32 v{t1}, v{dl}"); a(f"v_sub_u32 v{t1}, 0, v{t1}"); a(f"v_ldexp_f32 v{f}, 1.0, v{t1}")
    for i in range(8): a(f"v_sub_f32 v{Sq+i}, v{Sq+i}, v{dl}")
    for i in range(4): a(f"v_sub_f32 v{NM+4*qb+i}, v{NM+4*qb+i}, v{dl}")
    a(f"v_mul_f32 v{LR+qb}, v{LR+qb}, v{f}")
    for i in range(32):
        a(f"v_accvgpr_read_b32 v{t0}, a{O+32*qb+i}"); a(f"v_mul_f32 v{t0}, v{t0}, v{f}"); a(f"v_accvgpr_write_b32 a{O+32*qb+i}, v{t0}")
    for i in range(6): a(f"v_exp_f32 v{X+i}, v{Sq+i}")
    a(f"v_exp_f32 v{E+6}, v{Sq+6}"); a(f"v_exp_f32 v{E+7}, v{Sq+7}")
    a(f"v_add_f32 v{LT+qb}, v{X}, v{X+1}")
    for i in range(2, 6): a(f"v_add_f32 v{LT+qb}, v{LT+qb}, v{X+i}")
    a(f"v_add_f32 v{LT+qb}, v{LT+qb}, v{E+6}"); a(f"v_add_f32 v{LT+qb}, v{LT+qb}, v{E+7}")
    for j in range(3): a(f"v_cvt_pk_bf16_f32 v{Pq+j}, v{X+2*j}, v{X+2*j+1}")
    a("s_nop 1")
    a(f"s_setpc_b64 s[{sRET}:{sRET+1}]")
    return a

def attn_iter(name, t, u, last_body, uid, cfg=CFG):
    do_qk = t < 63
    mfm = []
    for qb in range(4):
        for kb in range(2):
            for s in range(4):
                if not do_qk: mfm.append(None); continue
                d = vr(S + 8*qb + 4*kb, 4)
                mfm.append(mf(d, ar(AF + 16*kb + 4*s, 4), vr(QF + 16*qb + 4*s, 4), vr(NM + 4*qb, 4) if s == 0 else d))
    par = t % 2
    for qb in range(4):
        for db in range(8):
            d = ar(O + 32*qb + 4*db, 4)
            mfm.append(mf(d, ar(VF + 4*db, 4), vr(P + 16*par + 4*qb, 4), d))
    A_, V_ = [[] for _ in range(64)], [[] for _ in range(64)]
    items = [(g - 64, x) for g, x in sm_stream(t % 2) if g >= 64]
    if t + 1 <= 63: items += [(g, x) for g, x in sm_stream((t + 1) % 2) if g < 64]
    for g, x in items:
        if isinstance(x, tuple):
            if cfg.get("nocheck"): continue
            _, qb, pr = x
            lab = f"L_{name}_c{uid}_{g}"
            A_[g].append(f"s_cbranch_vccnz {lab}_out")
            A_[g].append(f"{lab}:")
            STUBS.append((lab, f"L_{name}_slow_{qb}_{pr}"))
        else:
            if cfg.get("nocheck") and x.startswith("v_cmp"): continue
            if cfg.get("noadd") and x.startswith("v_add"): continue
            if cfg.get("noexp") and x.startswith("v_exp"): continue
            V_[g].append(x)
    stg = (t + 1) // 4; pos = (t + 1) % 4
    base = vNXT if u == 3 else vCUR
    vg = cfg["vgaps"][u] if isinstance(cfg["vgaps"][0], list) else cfg["vgaps"]
    kg = cfg["kgaps"][u] if isinstance(cfg["kgaps"][0], list) else cfg["kgaps"]
    bar = cfg.get("bargap", 31)
    LD = cfg.get("ld", 4)
    do_k = t + 2 <= 63
    kprev = cfg["kgaps"][(u - 1) % 4] if isinstance(cfg["kgaps"][0], list) else cfg["kgaps"]
    ev = [(g - 64, "Kp", i) for i, g in enumerate(kprev)] if t + 1 <= 63 else []
    ev += [(g, "V", i) for i, g in enumerate(vg)]
    if do_k: ev += [(g, "K", i) for i, g in enumerate(kg)]
    ev.sort()
    def need_at(g):
        if g < 8 and do_qk: return ("Kp", g)
        if 32 <= g < 40: return ("V", g - 32)
        return None
    covered = -10**9
    idx = {(k, i): n for n, (g, k, i) in enumerate(ev)}
    waits = {}
    prev_cover = cfg.get("_cover", {})
    def wait_for_mfma(g, covered):
        nd = need_at(g)
        if nd is None or nd not in idx or idx[nd] <= covered: return None, covered
        issued = [n for n, (gg, k, i) in enumerate(ev) if gg < g - 1]
        tgt = idx[nd]
        for n in issued:
            if ev[n][0] <= g - 1 - LD: tgt = max(tgt, n)
        assert tgt in issued, (t, g, nd)
        return len([n for n in issued if n > tgt]), tgt
    n0, covered = wait_for_mfma(0, covered)
    for g in range(1, 64):
        if u == 2 and g - 1 == bar: covered = max([n for n, e in enumerate(ev) if e[0] < bar] + [covered])
        n, covered = wait_for_mfma(g, covered)
        if n is not None and not (u == 2 and g - 1 == bar): waits[g - 1] = n
    for i, g in enumerate(vg):
        A_[g].append(f"ds_read_b128 {ar(VF + 4*i, 4)}, v{base} offset:{32768 + pos*8192 + i*1024}")
    if do_k:
        stg = (t + 2) // 4; pos = (t + 2) % 4
        base = vCUR if u < 2 else vNXT
        for i, g in enumerate(kg):
            A_[g].append(f"ds_read_b128 {ar(AF + 4*i, 4)}, v{base} offset:{pos*8192 + i*1024}")
        issued = sorted([(g, i) for i, g in enumerate(kg) if g < 63])
        tgt = 0
        for n, (g, i) in enumerate(issued):
            if g <= 63 - LD or i == 0: tgt = max(tgt, n)
        waits[63] = len(issued) - 1 - tgt
    for g, n in waits.items(): A_[g].insert(0, f"s_waitcnt lgkmcnt({n})")
    if u == 2:
        if not cfg.get("nobar"): A_[bar].insert(0, "s_barrier")
        A_[bar].insert(0, "s_waitcnt vmcnt(0) lgkmcnt(0)")
    i_body = t // 4
    grp = None
    if u == 0: grp = ("V", f"V{i_body+1}lo", False, True)
    elif u == 1: grp = ("V", f"V{i_body+1}hi", False, False)
    elif u == 2 and not last_body: grp = ("K", f"K{i_body+2}lo", True, True)
    elif u == 3 and not last_body: grp = ("K", f"K{i_body+2}hi", True, False)
    if grp and not cfg.get('nodma'):
        su, dm, po = kv_group(*grp)
        dg = cfg["dgaps"][u]
        A_[dg[0] - 1] += su
        for g, x in zip(dg, dm): A_[g].append(x)
        A_[dg[3] + 1] += po
    gaps = [A_[g] + V_[g] for g in range(64)]
    return mfm, gaps

def gen_attn(name="attn_kernel", cfg=CFG, stamps=False, fz=None):
    a = Asm() if fz is None else fz.a; lin = [] if fz is None else fz.lin
    if fz is not None: stamps = False
    def both(x):
        n = len(a.lines); a(x); lin.extend(a.lines[n:])
    a(kernel_header(name))
    both("s_cmp_ge_u32 s2, 256"); both(f"s_cbranch_scc1 L_{name}_end")
    both(f"s_load_dwordx2 s[{sWS}:{sWS+1}], s[0:1], {KA['ws']}")
    both(f"s_load_dwordx2 s[{sWQ}:{sWQ+1}], s[0:1], {KA['wq']}")
    if PREFETCH:
        for i, k in enumerate(("wo", "wg", "wu", "wd")): both(f"s_load_dwordx2 s[{SRD_PF+4*i}:{SRD_PF+4*i+1}], s[0:1], {KA[k]}")
    if fz: fz.load_ptrs()
    if stamps: stamp(both, 0)
    both("v_lshrrev_b32 v4, 6, v0")
    both("v_and_b32 v0, 63, v0")
    both(f"v_readfirstlane_b32 s{sWAVE}, v4")
    if fz: fz.stamp("attn start")
    both("s_and_b32 s38, s2, 7"); both("s_lshr_b32 s39, s2, 3")
    both(f"s_lshr_b32 s{sKVH}, s38, 1")
    both("s_and_b32 s38, s38, 1"); both("s_lshl_b32 s38, s38, 2")
    both(f"s_lshr_b32 s{sQB}, s39, 3"); both(f"s_add_u32 s{sQB}, s{sQB}, s38")
    both("s_and_b32 s39, s39, 7"); both(f"s_lshl_b32 s{sHEAD}, s{sKVH}, 3"); both(f"s_add_u32 s{sHEAD}, s{sHEAD}, s39")
    both("s_waitcnt lgkmcnt(0)")
    h = Asm()
    srd(h, SRD_W, sWQ, 0, 1024*4096*2); srd(h, SRD_H, sWS, WS_H1F, 4 << 20)
    srd(h, SRD_KV, sWS, WS_KV, 4 << 20); srd(h, SRD_O, sWS, WS_OF, 16 << 20)
    if fz:
        srd(h, sF_SRD, sWS, WS_FLAG, F_LINES*128); h(f"s_mov_b32 s{sF_WAVE}, s{sWAVE}")
    for l in h.lines: both(l)
    both(f"v_lshlrev_b32 v{vLANE16}, 4, v0")
    both(f"v_mov_b32 v{vCUR}, v{vLANE16}")
    both(f"v_add_u32 v{vNXT}, 0x10000, v{vLANE16}")
    both("v_lshrrev_b32 v9, 4, v0")
    both(f"s_and_b32 s38, s{sWAVE}, 1"); both("s_lshl_b32 s38, s38, 2")
    both("v_or_b32 v10, s38, v9")
    both("v_bfe_u32 v11, v0, 1, 3")
    both("v_xor_b32 v10, v10, v11")
    both("v_lshlrev_b32 v10, 5, v10")
    both("v_and_b32 v11, 1, v0"); both("v_lshlrev_b32 v11, 4, v11")
    both("v_lshl_add_u32 v10, v9, 13, v10"); both("v_add_u32 v10, v10, v11")
    both(f"s_lshl_b32 s38, s{sHEAD}, 8")
    both(f"v_add_u32 v{vW}, s38, v10")
    both(f"s_lshl_b32 s38, s{sQB}, 4"); both(f"s_lshl_b32 s39, s{sWAVE}, 2"); both("s_add_u32 s38, s38, s39"); both("s_lshl_b32 s38, s38, 15")
    both(f"v_add_u32 v{vB}, s38, v{vLANE16}")
    for tb in range(1, 4): both(f"v_add_u32 v{vB+tb}, 0x8000, v{vB+tb-1}")
    both("v_lshrrev_b32 v17, 4, v0")
    both("v_bfe_u32 v18, v0, 2, 2")
    both("v_lshl_add_u32 v19, v17, 3, v18")
    both("v_lshlrev_b32 v19, 8, v19")
    both("v_and_b32 v20, 3, v0"); both("v_lshl_add_u32 v19, v20, 3, v19")
    both(f"v_add_u32 v19, {hex(WBASE)}, v19")
    both("v_and_b32 v17, 1, v17"); both("v_lshl_or_b32 v18, v17, 2, v18")
    for ft in range(8):
        both(f"v_xor_b32 v20, {ft}, v18"); both(f"v_lshl_add_u32 v{vA+ft}, v20, 5, v19")
    both(f"s_lshl_b32 s{sWOFF}, s{sWAVE}, 16")
    both(f"s_lshl_b32 s{sWM0}, s{sWAVE}, 11"); both(f"s_add_u32 s{sWM0}, s{sWM0}, {hex(WBASE)}")
    both(f"s_mov_b32 s{sBOFF}, 0")
    both(f"s_lshl_b32 s38, s{sKVH}, 19"); both(f"s_lshl_b32 s39, s{sWAVE}, 13")
    both(f"s_add_u32 s{sKO}, s38, s39")
    both(f"s_add_u32 s{sVO}, s{sKO}, {hex((2 << 20) - 8192)}")
    both(f"s_mov_b32 s{sMC}, s39"); both(f"s_add_u32 s{sMN}, s39, 0x10000")
    both(f"s_mov_b32 s{sTH}, {hex(f32bits(THRESH))}")
    if PREFETCH:
        both(f"s_lshl_b32 s38, s2, 2"); both(f"s_add_u32 s38, s38, s{sWAVE}")
        both(f"s_lshl_b32 s{sPFA}, s38, 9"); both(f"s_mul_i32 s{sPFB}, s38, 448")
        for i in range(4):
            both(f"s_mov_b32 s{SRD_PF+4*i+2}, {(8 << 20) if i == 0 else 1024*7168}"); both(f"s_mov_b32 s{SRD_PF+4*i+3}, 0x20000")
    vm = VmSim()
    for st in range(6):
        sl = st % 8
        both(f"s_add_u32 m0, s{sWM0}, {sl*8192}"); both(f"s_add_u32 s{sWOFF2}, s{sWOFF}, {4*8192}")
        both(f"buffer_load_dwordx4 v{vW}, s[{SRD_W}:{SRD_W+3}], s{sWOFF} offen lds ; @dma=W{st}"); vm.issue(f"W{st}")
        both(f"s_add_u32 m0, s{sWM0}, {sl*8192+1024}"); both(f"s_add_u32 s{sWOFF}, s{sWOFF}, {32*8192}")
        both(f"buffer_load_dwordx4 v{vW}, s[{SRD_W}:{SRD_W+3}], s{sWOFF2} offen lds ; @dma=W{st}"); vm.issue(f"W{st}")
        if st >= 3:
            for tb in range(4):
                both(f"buffer_load_dwordx4 {ar(BR + 16*((st-3)%4) + 4*tb, 4)}, v{vB+tb}, s[{SRD_H}:{SRD_H+3}], s{sBOFF} offen"); vm.issue(f"B{st-3}")
            both(f"s_add_u32 s{sBOFF}, s{sBOFF}, 1024")
    if PREFETCH and not PF_WQ_LN1:
        both(f"s_and_b32 s38, s{sQB}, 3"); both("s_lshl_b32 s38, s38, 2"); both(f"s_add_u32 s38, s38, s{sWAVE}")
        both("s_lshl_b32 s38, s38, 19")
        both(f"s_lshl_b32 s39, s{sHEAD}, 8"); both("s_add_u32 s38, s38, s39")
        both("v_lshrrev_b32 v18, 1, v0"); both("v_lshlrev_b32 v18, 13, v18"); both("v_and_b32 v19, 1, v0"); both("v_lshl_add_u32 v18, v19, 7, v18")
        both(f"buffer_load_dword v212, v18, s[{SRD_W}:{SRD_W+3}], s38 offen"); vm.issue("PF")
        both(f"s_add_u32 s38, s38, {32*8192}")
        both(f"buffer_load_dword v213, v18, s[{SRD_W}:{SRD_W+3}], s38 offen"); vm.issue("PF")
    for i in range(128): both(f"v_accvgpr_write_b32 a{i}, 0")
    both(f"s_waitcnt vmcnt({vm.wait_for('B0')})")
    both("s_barrier")
    if stamps: stamp(both, 1)
    for ft in range(7):
        for hh in range(2):
            both(f"ds_read_b64_tr_b16 {ar(AF + 4*ft + 2*hh, 2)}, v{vA+ft} offset:{hh*1024} ; @rd=W0")
    def qstep(s):
        mfm, gaps = qproj_step(s)
        out = Asm(); pre = {}
        if s > 0:
            out(f"s_waitcnt vmcnt({vm.wait_for(f'B{s}')})")
            if s % 2 == 1: out("s_barrier")
        for ft in range(8):
            n = 12
            if s == 31: n = ((6 - ft) * 2 + (2 if ft >= 1 else 0)) if ft <= 6 else 0
            pre[4*ft] = [f"s_waitcnt lgkmcnt({n})"]
        interleave(out, mfm, gaps, pre)
        for l in out.lines:
            I = parse(l)
            if I is not None and I.kind == "vm": vm.issue((I.tags.get("dma") or I.tags.get("b"))[0])
        return out.lines
    bodies = [sum((qstep(s) for s in range(8*b, 8*b + 8)), []) for b in range(4)]
    strip = lambda L: [re.sub(r"\s*;.*", "", l) for l in L]
    assert strip(bodies[1]) == strip(bodies[2]), "Q loop body not uniform"
    for l in bodies[0]: a(l)
    a(f"s_mov_b32 s{sCNT}, 2")
    a(".p2align 4"); a.label(f"L_{name}_q")
    for l in bodies[1]: a(l)
    a(f"s_sub_u32 s{sCNT}, s{sCNT}, 1"); a(f"s_cmp_lg_u32 s{sCNT}, 0"); a(f"s_cbranch_scc1 L_{name}_q")
    for l in bodies[3]: a(l)
    lin += bodies[0] + bodies[1] + bodies[2] + bodies[3]
    if stamps: stamp(both, 2)
    if fz: fz.stamp("qproj done")
    both("s_nop 7")
    for qb in range(4):
        for s in range(4):
            for hh in range(2):
                src = ACC + 16*(2*s + hh) + 4*qb
                both(f"v_cvt_pk_bf16_f32 v{QF + 16*qb + 4*s + 2*hh}, v{src}, v{src+1}")
                both(f"v_cvt_pk_bf16_f32 v{QF + 16*qb + 4*s + 2*hh + 1}, v{src+2}, v{src+3}")
    both("s_waitcnt vmcnt(0)")
    both("s_barrier")
    for lo in (True, False):
        su, dm, po = kv_group("K", f"K1{'lo' if lo else 'hi'}", False, lo)
        for x in su: both(x)
        both("s_nop 0")
        for x in dm + po: both(x)
    if PREFETCH: both(f"v_lshlrev_b32 v{vPF}, 3, v0")
    for i in range(8): both(f"ds_read_b128 {ar(AF + 4*i, 4)}, v{vCUR} offset:{i*1024}")
    both("s_waitcnt lgkmcnt(0)")
    for qb in range(4):
        for kb in range(2):
            for s in range(4):
                d = vr(S + 8*qb + 4*kb, 4)
                both(mf(d, ar(AF + 16*kb + 4*s, 4), vr(QF + 16*qb + 4*s, 4), "0" if s == 0 else d))
    for i in range(8): both(f"ds_read_b128 {ar(AF + 4*i, 4)}, v{vCUR} offset:{8192 + i*1024}")
    both("s_nop 7")
    T0 = lambda qb: TMP + 3*qb
    for st in range(4):
        for qb in range(4):
            Sq = S + 8*qb; t0 = T0(qb)
            both([f"v_max3_f32 v{t0}, v{Sq}, v{Sq+1}, v{Sq+2}", f"v_max3_f32 v{t0}, v{t0}, v{Sq+3}, v{Sq+4}",
                  f"v_max3_f32 v{t0}, v{t0}, v{Sq+5}, v{Sq+6}", f"v_max_f32 v{t0}, v{t0}, v{Sq+7}"][st])
    for swp in ("v_permlane16_swap_b32", "v_permlane32_swap_b32"):
        for qb in range(4): both(f"v_mov_b32 v{T0(qb)+1}, v{T0(qb)}")
        for qb in range(4): both(f"{swp} v{T0(qb)}, v{T0(qb)+1}")
        for qb in range(4): both(f"v_max_f32 v{T0(qb)}, v{T0(qb)}, v{T0(qb)+1}")
    for qb in range(4): both(f"v_ceil_f32 v{T0(qb)+2}, v{T0(qb)}")
    for qb in range(4): both(f"v_add_f32 v{T0(qb)+2}, {hex(f32bits(OFFSET))}, v{T0(qb)+2}")
    for qb in range(4):
        Sq = S + 8*qb; dl = T0(qb) + 2
        for i in range(8): both(f"v_sub_f32 v{Sq+i}, v{Sq+i}, v{dl}")
        for i in range(4): both(f"v_sub_f32 v{NM+4*qb+i}, 0, v{dl}")
        both(f"v_mov_b32 v{LR+qb}, 0")
    items0 = [(g, x) for g, x in sm_stream(0) if g < 64 and not isinstance(x, tuple) and not x.startswith("v_cmp")]
    used = 0
    for qb in range(3):
        def belongs(x):
            if x.startswith("v_exp"): return any(x.endswith(f", v{S + 8*qb + i}") for i in range(8))
            if x.startswith("v_add"): return x.split()[1] in (f"v{LT+qb},", f"v{LR+qb},")
            if x.startswith("v_cvt"): return x.split()[1] in [f"v{P + 4*qb + j}," for j in range(4)]
            return False
        mine = sorted([(g, x) for g, x in items0 if belongs(x)], key=lambda z: z[0])
        used += len(mine)
        for g, x in mine:
            if x.startswith("v_exp"): both(x)
        both("s_nop 0")
        for g, x in mine:
            if not x.startswith("v_exp"): both(x)
    assert used == len(items0), (used, len(items0))
    both("s_waitcnt lgkmcnt(0)")
    def body(i_body, last, uid):
        out = Asm()
        for u in range(4):
            t = 4*i_body + u
            mfm, gaps = attn_iter(name, t, u, last, f"{uid}_{u}", cfg)
            if PREFETCH and not cfg.get('nopf'):
                g = cfg.get("pfgap", [40, 40, 61, 40])[u]
                gaps[g].insert(0, f"buffer_load_dword v{vPFD+u}, v{vPF}, s[{SRD_PF+4*u}:{SRD_PF+4*u+3}], s{sPFA if u == 0 else sPFB} offen")
                if u == 0: gaps[g+1].insert(0, f"s_add_u32 s{sPFA}, s{sPFA}, {(8 << 20)//16}")
                if u == 3: gaps[g+1].insert(0, f"s_add_u32 s{sPFB}, s{sPFB}, {1024*7168//16}")
            interleave(out, mfm, gaps)
        return out.lines
    swap = [f"v_xor_b32 v{vCUR}, 0x10000, v{vCUR}", f"v_xor_b32 v{vNXT}, 0x10000, v{vNXT}",
            f"s_xor_b32 s{sMC}, s{sMC}, 0x10000", f"s_xor_b32 s{sMN}, s{sMN}, 0x10000"]
    if stamps: stamp(both, 3)
    a(f"s_mov_b32 s{sCNT}, 15")
    a(".p2align 6"); a.label(f"L_{name}_main")
    for l in body(0, False, "m"): a(l)
    for l in swap: a(l)
    a(f"s_sub_u32 s{sCNT}, s{sCNT}, 1"); a(f"s_cmp_lg_u32 s{sCNT}, 0"); a(f"s_cbranch_scc1 L_{name}_main")
    for l in body(15, True, "z"): a(l)
    nocold = lambda L: [l for l in L if "@cold" not in l]
    for ib in range(15): lin += nocold(body(ib, False, "m")) + swap + ["s_nop 0"]*3
    lin += nocold(body(15, True, "z"))
    if stamps: stamp(both, 4)
    if fz:
        fz.stamp("attn main done"); both("s_barrier")
    both("s_nop 7")
    r0 = TMP
    both(f"s_lshl_b32 s38, s{sQB}, 4"); both(f"s_lshl_b32 s39, s{sWAVE}, 2"); both("s_add_u32 s38, s38, s39")
    both("s_lshl_b32 s38, s38, 17"); both(f"s_lshl_b32 s39, s{sHEAD}, 12"); both("s_add_u32 s38, s38, s39")
    for qb in range(4):
        t0, t1 = r0, r0 + 1
        both(f"v_mov_b32 v{t0}, v{LR+qb}"); both(f"v_mov_b32 v{t1}, v{LR+qb}"); both("s_nop 1")
        both(f"v_permlane16_swap_b32 v{t0}, v{t1}"); both(f"v_add_f32 v{t0}, v{t0}, v{t1}")
        both(f"v_mov_b32 v{t1}, v{t0}"); both("s_nop 1"); both(f"v_permlane32_swap_b32 v{t0}, v{t1}"); both(f"v_add_f32 v{t0}, v{t0}, v{t1}")
        both(f"v_rcp_f32 v{LT+qb}, v{t0}")
    both("s_nop 0")
    for qb in range(4):
        for s in range(4):
            X = TMP + 8*((qb*4 + s) % 2); Y = TMP + 16 + 4*((qb*4 + s) % 4)
            for j in range(8):
                both(f"v_accvgpr_read_b32 v{X+j}, a{O + 32*qb + 8*s + j}")
            for j in range(8): both(f"v_mul_f32 v{X+j}, v{X+j}, v{LT+qb}")
            for j in range(4): both(f"v_cvt_pk_bf16_f32 v{Y+j}, v{X+2*j}, v{X+2*j+1}")
            both(f"buffer_store_dwordx4 {vr(Y, 4)}, v{vLANE16}, s[{SRD_O}:{SRD_O+3}], s38 offen offset:{s*1024}{STF if fz is None else LDF}")
        if qb < 3: both("s_add_u32 s38, s38, 0x20000")
    if fz:
        both(f"s_lshl_b32 s38, s{sQB}, 1"); both(f"s_lshr_b32 s39, s{sHEAD}, 4"); both("s_add_u32 s38, s38, s39")
        both(f"s_add_u32 s38, s38, {F_S1}"); both(f"s_lshl_b32 s{sF_SIG}, s38, 7")
        a(f"s_branch L_{name}_next")
    else:
        both("s_waitcnt vmcnt(0)")
    if stamps:
        stamp(both, 5); stamp_store(both, 6, sWS, kidx=2); both("s_waitcnt vmcnt(0)")
    a.label(f"L_{name}_end"); a("s_endpgm")
    seen = set()
    for lab, tgt in STUBS:
        if lab in seen or (lab + ":") not in a.lines: continue
        seen.add(lab)
        a.label(lab + "_out"); a(f"s_call_b64 s[{sRET}:{sRET+1}], {tgt}"); a(f"s_branch {lab}")
    STUBS.clear()
    slows = []
    for qb in range(4):
        for par in range(2):
            sp = slow_path(name, qb, par)
            for l in sp.lines: a(l)
            slows.append(sp.lines)
    if fz: a.label(f"L_{name}_next")
    return a, lin, slows

if __name__ == "__main__":
    a, lin, slows = gen_attn()
    e = check(lin, "attn")
    for s in slows: e += check(s, "slow")
    print("errors:", len(e), "instrs:", len(a.lines))
```

```python
from common import *
from k_attn import VmSim, mf

vLANE16 = 1; vW = 2; vB = 3; vW2 = 16
vA = 8
vT = 17
ACC = 64
AF = 0
BR = 64
sWS = 4; sWp = 6; sRES = 8; sOUT = 10
SRD_W = 12; SRD_A = 16; SRD_R = 20; SRD_O = 24; SRD_M = 28; SRD_X = 32; SRD_F = 36
sWAVE = 40; sTT = 41; sFT = 42; sKH = 43; sWOFF = 44; sWOFF2 = 45; sWM0 = 46; sMA = 47; sMB = 51; sBOFF = 48; sCNT = 49; sDBG = 60
D = 12; DB = 7; NBAR = 4
SPIN = 1 << 18
GCFG = dict(waits=4, wg=(1, 5), bg=(9, 13), dsfirst=True)

def gen_g128(name, KS_TOTAL, w_key, act_off, act_size, res_kind, out_kind, mod_idx, gscale, ex_off, kidx, stamps=False, mode='exchange', fz=None):
    NS = KS_TOTAL // 2
    global D, DB
    D = GCFG.get('D', 12); DB = GCFG.get('DB', 7)
    a = Asm() if fz is None else fz.a; lin = [] if fz is None else fz.lin
    if fz is not None: stamps = False
    ldf = LDF if fz else ""
    def both(x):
        n = len(a.lines); a(x); lin.extend(a.lines[n:])
    def step(s):
        mfm, gaps = [], [[] for _ in range(16)]
        bs = s % 8
        for i in range(8):
            for tb in range(2):
                d = vr(ACC + 8*i + 4*tb, 4)
                mfm.append(mf(d, ar(AF + 4*i, 4), ar(BR + 8*bs + 4*tb, 4), d if s > 0 else "0"))
        def ard(i, st, half):
            off = (st % 8) * 8192 + half * 4096
            return f"ds_read_b64_tr_b16 {ar(AF + 4*i + 2*half, 2)}, v{vA+i} offset:{off} ; @rd=W{st}"
        tog = (s % 8 == 7 and s + 1 < NS)
        pair = GCFG.get("pair", ())
        gaps[0].append(ard(7, s, 0)); gaps[0 if 1 in pair else 1].append(ard(7, s, 1))
        if s + 1 < NS:
            for i in range(7):
                if tog: gaps[2*i + 1].append(f"v_xor_b32 v{vA+i}, 0x10000, v{vA+i}")
                gaps[2*i + 2].append(ard(i, s + 1, 0)); gaps[2*i + 2 if (2*i + 3) in pair else 2*i + 3].append(ard(i, s + 1, 1))
            if tog: gaps[15].append(f"v_xor_b32 v{vA+7}, 0x10000, v{vA+7}")
        if s + D < NS:
            tag = f"; @dma=W{s+D}"
            u = s % 8
            base, so = (sMA, (u + 4)*8192) if u < 4 else (sMB, (u - 4)*8192)
            w0, w1 = GCFG["wg"]
            mo = GCFG.get("m0off", 1)
            gaps[(w0 - mo) if w0 - mo >= 0 else 0].append(f"s_add_u32 m0, s{base}, {so}")
            gaps[w0].append(f"buffer_load_dwordx4 v{vW}, s[{SRD_W}:{SRD_W+3}], s{sWOFF} offen lds {tag}")
            gaps[w1 - mo].append(f"s_add_u32 m0, s{base}, {so + 4096}")
            gaps[w1].append(f"buffer_load_dwordx4 v{vW2}, s[{SRD_W}:{SRD_W+3}], s{sWOFF} offen lds {tag}")
            gaps[w1 + 1].append(f"s_add_u32 s{sWOFF}, s{sWOFF}, {32*2048}")
        if s % 8 == 7:
            gaps[10].append(f"s_xor_b32 s{sMA}, s{sMA}, 0x10000"); gaps[11].append(f"s_xor_b32 s{sMB}, s{sMB}, 0x10000")
        if s + DB < NS:
            b2 = (s + DB) % 8
            gaps[GCFG["bg"][0]].append(f"buffer_load_dwordx4 {ar(BR + 8*b2, 4)}, v{vB}, s[{SRD_A}:{SRD_A+3}], s{sBOFF} offen{ldf} ; @b=B{s+DB}")
            gaps[GCFG["bg"][1]].append(f"buffer_load_dwordx4 {ar(BR + 8*b2 + 4, 4)}, v{vB+1}, s[{SRD_A}:{SRD_A+3}], s{sBOFF} offen{ldf} ; @b=B{s+DB}")
            gaps[min(15, GCFG["bg"][1] + 1)].append(f"s_add_u32 s{sBOFF}, s{sBOFF}, 1024")
        return mfm, gaps
    if fz is None:
        a(kernel_header(name))
        both("s_cmp_ge_u32 s2, 256"); both(f"s_cbranch_scc1 L_{name}_end")
    if fz is None:
        both(f"s_load_dwordx2 s[{sWS}:{sWS+1}], s[0:1], {KA['ws']}")
        both(f"s_load_dwordx2 s[{sWp}:{sWp+1}], s[0:1], {KA[w_key]}")
    else: fz.ptr(sWp, w_key)
    if fz is None:
        if res_kind[0] == "arg": both(f"s_load_dwordx2 s[{sRES}:{sRES+1}], s[0:1], {KA[res_kind[1]]}")
        if out_kind[0] == "arg": both(f"s_load_dwordx2 s[{sOUT}:{sOUT+1}], s[0:1], {KA[out_kind[1]]}")
    else:
        if res_kind[0] == "arg": fz.ptr(sRES, res_kind[1])
        if out_kind[0] == "arg": fz.ptr(sOUT, out_kind[1])
    if stamps: stamp(both, 0)
    if fz is None:
        both("v_lshrrev_b32 v4, 6, v0"); both("v_and_b32 v0, 63, v0"); both(f"v_readfirstlane_b32 s{sWAVE}, v4")
    else: both(f"s_mov_b32 s{sWAVE}, s{sF_WAVE}")
    both("s_and_b32 s52, s2, 7"); both("s_lshr_b32 s53, s2, 3")
    both(f"s_and_b32 s{sKH}, s52, 1")
    both("s_lshr_b32 s52, s52, 1"); both("s_lshl_b32 s52, s52, 2"); both(f"s_lshr_b32 s{sTT}, s53, 3"); both(f"s_add_u32 s{sTT}, s{sTT}, s52")
    both(f"s_and_b32 s{sFT}, s53, 7")
    if fz is None: both("s_waitcnt lgkmcnt(0)")
    h = Asm()
    srd(h, SRD_W, sWp, 0, KS_TOTAL*32*2048); srd(h, SRD_A, sWS, act_off, act_size)
    if res_kind[0] == "arg": srd(h, SRD_R, sRES, 0, 4 << 20)
    else: srd(h, SRD_R, sWS, res_kind[1], 4 << 20)
    if out_kind[0] == "arg": srd(h, SRD_O, sOUT, 0, 4 << 20)
    else: srd(h, SRD_O, sWS, out_kind[1], (8 << 20) if mode == "partial" else (4 << 20))
    srd(h, SRD_M, sWS, WS_MOD + mod_idx*4096, 4096)
    srd(h, SRD_X, sWS, ex_off, 8 << 20)
    srd(h, SRD_F, sWS, WS_FLAG, F_LINES*128)
    for l in h.lines: both(l)
    both(f"v_lshlrev_b32 v{vLANE16}, 4, v0")
    both("v_lshrrev_b32 v19, 4, v0"); both(f"s_and_b32 s52, s{sWAVE}, 1"); both("s_lshl_b32 s52, s52, 2"); both("v_or_b32 v17, s52, v19")
    both("v_bfe_u32 v18, v0, 1, 3"); both("v_xor_b32 v17, v17, v18"); both("v_lshlrev_b32 v17, 5, v17")
    both("v_and_b32 v18, 1, v0"); both("v_lshl_add_u32 v17, v18, 4, v17"); both("v_lshl_add_u32 v17, v19, 11, v17")
    both(f"s_lshl_b32 s52, s{sFT}, 8"); both(f"v_add_u32 v{vW}, s52, v17"); both(f"v_add_u32 v{vW2}, {16*2048}, v{vW}")
    both(f"s_mul_i32 s{sWOFF}, s{sKH}, {NS*32*2048}"); both(f"s_lshl_b32 s52, s{sWAVE}, 13"); both(f"s_add_u32 s{sWOFF}, s{sWOFF}, s52")
    both(f"s_lshl_b32 s{sWM0}, s{sWAVE}, 10")
    both(f"s_add_u32 s{sMA}, s{sWM0}, 0x10000"); both(f"s_mov_b32 s{sMB}, s{sWM0}")
    both(f"s_lshl_b32 s52, s{sTT}, 3"); both(f"s_lshl_b32 s53, s{sWAVE}, 1"); both("s_add_u32 s52, s52, s53"); both(f"s_mul_i32 s52, s52, {KS_TOTAL*1024}")
    both(f"v_add_u32 v{vB}, s52, v{vLANE16}"); both(f"v_add_u32 v{vB+1}, {KS_TOTAL*1024}, v{vB}")
    both(f"s_mul_i32 s{sBOFF}, s{sKH}, {NS*1024}")
    both("v_lshrrev_b32 v19, 4, v0"); both("v_bfe_u32 v17, v0, 2, 2"); both("v_lshl_add_u32 v19, v19, 2, v17")
    both("v_and_b32 v17, 7, v19");
    if mode == "exchange": both(f"s_lshl_b32 s52, s{sKH}, 2"); both("v_xor_b32 v17, s52, v17")
    both("v_lshlrev_b32 v19, 8, v19"); both("v_and_b32 v18, 3, v0"); both("v_lshl_add_u32 v19, v18, 3, v19")
    for i in range(8):
        both(f"v_xor_b32 v18, {i}, v17"); both(f"v_lshl_add_u32 v{vA+i}, v18, 5, v19")
    vm = VmSim()
    def wpro(st):
        both(f"s_add_u32 m0, s{sWM0}, {st*8192}"); both("s_nop 0")
        both(f"buffer_load_dwordx4 v{vW}, s[{SRD_W}:{SRD_W+3}], s{sWOFF} offen lds ; @dma=W{st}"); vm.issue(f"W{st}")
        both(f"s_add_u32 m0, s{sWM0}, {st*8192 + 4096}"); both("s_nop 0")
        both(f"buffer_load_dwordx4 v{vW2}, s[{SRD_W}:{SRD_W+3}], s{sWOFF} offen lds ; @dma=W{st}"); vm.issue(f"W{st}")
        both(f"s_add_u32 s{sWOFF}, s{sWOFF}, {32*2048}")
    def bpro(sb):
        for tb in range(2):
            both(f"buffer_load_dwordx4 {ar(BR + 8*(sb % 8) + 4*tb, 4)}, v{vB+tb}, s[{SRD_A}:{SRD_A+3}], s{sBOFF} offen{ldf}"); vm.issue(f"B{sb}")
        both(f"s_add_u32 s{sBOFF}, s{sBOFF}, 1024")
    if fz is None:
        for vs in range(-D, 0):
            wpro(vs + D)
            if vs + DB >= 0: bpro(vs + DB)
    else:
        both(f"s_lshr_b32 s52, s{sTT}, 1"); both("s_lshl_b32 s52, s52, 1"); both(f"s_add_u32 s52, s52, s{sKH}")
        both(f"s_add_u32 s52, s52, {F_S1 if mode == 'partial' else F_S4}"); both(f"s_lshl_b32 s{sF_WAIT}, s52, 7")
        fz.stamp(name[:2] + " setup")
        fz.handoff(16)
        for st in range(D): wpro(st)
        both("s_barrier")
        fz.stamp(name[:2] + " go")
        for sb in range(DB): bpro(sb)
    vRO = 5; vGO = 6; vXO = 7
    both("v_and_b32 v19, 15, v0"); both(f"s_lshl_b32 s52, s{sTT}, 7"); both(f"s_lshl_b32 s53, s{sWAVE}, 5"); both("s_add_u32 s52, s52, s53")
    both("v_add_u32 v19, s52, v19"); both("v_lshlrev_b32 v19, 11, v19")
    both("v_bfe_u32 v17, v0, 4, 1"); both("v_lshlrev_b32 v17, 4, v17"); both("v_bfe_u32 v18, v0, 5, 1"); both("v_lshl_or_b32 v17, v18, 3, v17")
    both(f"s_lshl_b32 s52, s{sFT}, 7")
    if mode == "exchange": both(f"s_lshl_b32 s53, s{sKH}, 6"); both("s_add_u32 s52, s52, s53")
    both("v_add_u32 v17, s52, v17")
    both(f"v_lshl_add_u32 v{vRO}, v17, 1, v19"); both(f"v_lshlrev_b32 v{vGO}, 2, v17")
    both(f"s_waitcnt vmcnt({vm.wait_for('B0')})")
    both("s_barrier")
    if stamps: stamp(both, 1)
    for i in range(7):
        for hh in range(2):
            both(f"ds_read_b64_tr_b16 {ar(AF + 4*i + 2*hh, 2)}, v{vA+i} offset:{hh*4096} ; @rd=W0")
    def qstep(s):
        mfm, gaps = step(s)
        out = Asm(); pre = {}
        if s > 0:
            out(f"s_waitcnt vmcnt({vm.wait_for(f'B{s}')})")
            if s % NBAR == NBAR - 1: out("s_barrier")
        if GCFG["waits"] == 4:
            for i in range(0, 8, 2):
                n = 10
                if s == NS - 1: n = [10, 8, 4, 0][i // 2]
                pre[2*i] = [f"s_waitcnt lgkmcnt({n})"]
        else:
            pre[0] = ["s_waitcnt lgkmcnt(6)"]
            pre[8] = [f"s_waitcnt lgkmcnt({6 if s < NS - 1 else 0})"]
        if s == NS - 1: pre[14] = ["s_waitcnt lgkmcnt(0)"]
        interleave(out, mfm, gaps, pre)
        for l in out.lines:
            I = parse(l)
            if I is not None and I.kind == "vm": vm.issue((I.tags.get("dma") or I.tags.get("b"))[0])
        return out.lines
    nb = NS // 8
    bodies = [sum((qstep(s) for s in range(8*b, 8*b + 8)), []) for b in range(nb)]
    strip = lambda L: [re.sub(r"\s*;.*", "", l) for l in L]
    for b in range(2, nb - 2): assert strip(bodies[1]) == strip(bodies[b]), f"loop body {b} not uniform"
    for l in bodies[0]: a(l)
    a(f"s_mov_b32 s{sCNT}, {nb - 3}")
    a(".p2align 4"); a.label(f"L_{name}_k")
    for l in bodies[1]: a(l)
    a(f"s_sub_u32 s{sCNT}, s{sCNT}, 1"); a(f"s_cmp_lg_u32 s{sCNT}, 0"); a(f"s_cbranch_scc1 L_{name}_k")
    for l in bodies[nb - 2] + bodies[nb - 1]: a(l)
    for b in bodies: lin += b
    if stamps: stamp(both, 2)
    if fz:
        fz.stamp(name[:2] + " main done"); both("s_barrier")
    if mode == "partial":
        both("s_nop 4")
        both(f"s_lshl_b32 s52, s{sKH}, 22")
        for p in range(4):
            for tb in range(2):
                X = ACC + 8*(2*p) + 4*tb; Y = ACC + 8*(2*p + 1) + 4*tb; T = 20 + 4*((2*p + tb) % 4)
                for r in range(4): both(f"v_permlane16_swap_b32 v{X+r}, v{Y+r}")
                both(f"v_cvt_pk_bf16_f32 v{T}, v{X}, v{X+1}"); both(f"v_cvt_pk_bf16_f32 v{T+1}, v{X+2}, v{X+3}")
                both(f"v_cvt_pk_bf16_f32 v{T+2}, v{Y}, v{Y+1}"); both(f"v_cvt_pk_bf16_f32 v{T+3}, v{Y+2}, v{Y+3}")
                both(f"s_add_u32 s53, s52, {tb*16*2048 + p*64}")
                both(f"buffer_store_dwordx4 {vr(T, 4)}, v{vRO}, s[{SRD_O}:{SRD_O+3}], s53 offen{STF if fz is None else LDF}")
        if fz:
            both(f"s_add_u32 s52, s{sTT}, {F_S2}"); both(f"s_lshl_b32 s{sF_SIG}, s52, 7")
            return a, [lin]
        if stamps:
            both("s_waitcnt vmcnt(0)")
            for i in range(3, 7): stamp(both, i)
            stamp_store(both, 7, sWS, vtmp=200, kidx=kidx); both("s_waitcnt vmcnt(0)")
        a.label(f"L_{name}_end"); a("s_endpgm")
        return a, [lin]
    both(f"s_lshl_b32 s52, s2, 15"); both(f"s_lshl_b32 s53, s{sWAVE}, 13"); both("s_add_u32 s52, s52, s53")
    both("s_xor_b32 s54, s2, 1"); both("s_lshl_b32 s54, s54, 15"); both("s_add_u32 s54, s54, s53")
    both("s_nop 4")
    for q in range(8):
        i, tb = 4 + q // 2, q % 2
        if q == 4: both("s_add_u32 s52, s52, 4096")
        both(f"buffer_store_dwordx4 {vr(ACC + 8*i + 4*tb, 4)}, v{vLANE16}, s[{SRD_X}:{SRD_X+3}], s52 offen offset:{(q % 4)*1024} sc1")
    RES = 16; GV = 32
    for p in range(2):
        for tb in range(2):
            both(f"s_mov_b32 s53, {tb*16*2048 + p*64}")
            both(f"buffer_load_dwordx4 {vr(RES + 4*(2*p + tb), 4)}, v{vRO}, s[{SRD_R}:{SRD_R+3}], s53 offen{ldf}")
        both(f"buffer_load_dwordx4 {vr(GV + 8*p, 4)}, v{vGO}, s[{SRD_M}:{SRD_M+3}], 0 offen offset:{p*128}")
        both(f"buffer_load_dwordx4 {vr(GV + 8*p + 4, 4)}, v{vGO}, s[{SRD_M}:{SRD_M+3}], 0 offen offset:{p*128 + 16}")
    both("s_waitcnt vmcnt(8)")
    both("s_barrier")
    if stamps: stamp(both, 3)
    a(f"s_cmp_lg_u32 s{sWAVE}, 0"); a(f"s_cbranch_scc1 L_{name}_wait")
    a("s_lshl_b32 s52, s2, 7"); a("s_xor_b32 s53, s52, 128")
    a("v_mov_b32 v48, 1"); a("v_mov_b32 v49, s52"); a("v_mov_b32 v51, s53")
    a("s_mov_b64 s[58:59], exec"); a("s_mov_b64 exec, 1")
    a(f"buffer_store_dword v48, v49, s[{SRD_F}:{SRD_F+3}], 0 offen sc1")
    a(f"s_mov_b32 s57, {SPIN}")
    a.label(f"L_{name}_poll")
    a(f"buffer_load_dword v50, v51, s[{SRD_F}:{SRD_F+3}], 0 offen sc1")
    a("s_waitcnt vmcnt(0)")
    a("v_readfirstlane_b32 s60, v50") if False else a("v_readfirstlane_b32 s53, v50")
    a("s_cmp_eq_u32 s53, 1"); a(f"s_cbranch_scc1 L_{name}_got")
    a("s_sleep 1"); a("s_sub_u32 s57, s57, 1"); a("s_cmp_lg_u32 s57, 0"); a(f"s_cbranch_scc1 L_{name}_poll")
    a.label(f"L_{name}_got")
    a("s_mov_b64 exec, s[58:59]")
    a.label(f"L_{name}_wait")
    both("s_barrier")
    if stamps: stamp(both, 4)
    XB = 96 + 32
    for q in range(8):
        if q == 4: both("s_add_u32 s54, s54, 4096")
        both(f"buffer_load_dwordx4 {vr(XB + 4*q, 4)}, v{vLANE16}, s[{SRD_X}:{SRD_X+3}], s54 offen offset:{(q % 4)*1024} sc1")
    if gscale != 1.0:
        both(f"s_mov_b32 s52, {hex(f32bits(gscale))}")
    both("s_waitcnt vmcnt(8)")
    if gscale != 1.0:
        for i in range(16): both(f"v_mul_f32 v{GV+i}, s52, v{GV+i}")
    for q in range(8):
        both(f"s_waitcnt vmcnt({7-q})")
        i, tb = q // 2, q % 2
        for r in range(4): both(f"v_add_f32 v{ACC + 8*i + 4*tb + r}, v{ACC + 8*i + 4*tb + r}, v{XB + 4*q + r}")
    if stamps: stamp(both, 5)
    for p in range(2):
        for tb in range(2):
            X = ACC + 8*(2*p) + 4*tb; Y = ACC + 8*(2*p + 1) + 4*tb
            both("s_nop 1")
            for r in range(4): both(f"v_permlane16_swap_b32 v{X+r}, v{Y+r}")
            rr = RES + 4*(2*p + tb); T = 52
            for i in range(4):
                both(f"v_lshlrev_b32 v{T+2*i}, 16, v{rr+i}"); both(f"v_and_b32 v{T+2*i+1}, 0xffff0000, v{rr+i}")
            for r in range(4):
                both(f"v_fmac_f32 v{T+r}, v{X+r}, v{GV+8*p+r}"); both(f"v_fmac_f32 v{T+4+r}, v{Y+r}, v{GV+8*p+4+r}")
            for i in range(4): both(f"v_cvt_pk_bf16_f32 v{rr+i}, v{T+2*i}, v{T+2*i+1}")
            both(f"s_mov_b32 s53, {tb*16*2048 + p*64}")
            both(f"buffer_store_dwordx4 {vr(rr, 4)}, v{vRO}, s[{SRD_O}:{SRD_O+3}], s53 offen{STF}")
    if stamps:
        both("s_waitcnt vmcnt(0)"); stamp(both, 6); stamp_store(both, 7, sWS, vtmp=200, kidx=kidx); both("s_waitcnt vmcnt(0)")
    a.label(f"L_{name}_end"); a("s_endpgm")
    return a, [lin]

def gen_oproj(stamps=False, fz=None):
    return gen_g128("oproj_kernel", 128, "wo", WS_OF, 16 << 20, ("arg", "x"), ("ws", WS_OP), 2, 1.0, WS_EX, 3, stamps, mode="partial", fz=fz)
def gen_down(stamps=False, fz=None):
    return gen_g128("down_kernel", 112, "wd", WS_HHF, 128*112*1024, ("ws", WS_X2), ("arg", "out"), 5, 1.0/LOG2E, WS_EX + (8 << 20), 6, stamps, fz=fz)

if __name__ == "__main__":
    for f in (gen_oproj, gen_down):
        a, lins = f()
        e = []
        for l in lins: e += check(l, "g128")
        print("errors:", len(e), "instrs:", len(a.lines))
```

```python
from common import *
from k_attn import VmSim, mf

vLANE16 = 1; vW = 2; vB = 3
vA = 8
TMP = 16
ACC = 32
AF = 0
BR = 64
sWS = 4; sWG = 6; sWU = 8
SRD_G = 12; SRD_U = 16; SRD_H = 20; SRD_O = 24
sWAVE = 28; sTB = 29; sCJ = 30; sWOFF = 31; sWOFF2 = 32; sWM0 = 33; sSLOT = 34; sBOFF = 35; sCNT = 36; sM = 37
PITCH = 7168
NS = 32; D = 6; DB = 3
LDG = ''; STG = ''

def step(s):
    mfm, gaps = [], [[] for _ in range(56)]
    bs = s % 4
    for at in range(14):
        for tb in range(4):
            d = vr(ACC + 16*at + 4*tb, 4)
            mfm.append(mf(d, ar(AF + 4*at, 4), ar(BR + 16*bs + 4*tb, 4), d if s > 0 else "0"))
    def ard(at, st, half):
        i, m = at // 2, at % 2
        off = (st % 4) * 16384 + m * 8192 + half * 1024
        return f"ds_read_b64_tr_b16 {ar(AF + 4*at + 2*half, 2)}, v{vA+i} offset:{off} ; @rd=W{st}"
    gaps[0].append(ard(13, s, 0)); gaps[1].append(ard(13, s, 1))
    if s % 4 == 3 and s + 1 < NS:
        for i in range(7): gaps[2 + (i // 4)].append(f"v_xor_b32 v{vA+i}, 0x10000, v{vA+i}")
    if s + 1 < NS:
        for at in range(13):
            gaps[4*at + 4].append(ard(at, s + 1, 0)); gaps[4*at + 5].append(ard(at, s + 1, 1))
    if s + D < NS:
        tag = f"; @dma=W{s+D}"
        gaps[2].append(f"s_add_u32 s{sM}, s{sWM0}, s{sSLOT}")
        gaps[3].append(f"s_mov_b32 m0, s{sM}")
        gaps[6].append(f"buffer_load_dwordx4 v{vW}, s[{SRD_G}:{SRD_G+3}], s{sWOFF} offen lds {tag}")
        gaps[7].append(f"s_add_u32 s{sWOFF2}, s{sWOFF}, {4*PITCH}")
        gaps[10].append(f"s_add_u32 m0, s{sM}, 1024")
        gaps[11].append(f"buffer_load_dwordx4 v{vW}, s[{SRD_G}:{SRD_G+3}], s{sWOFF2} offen lds {tag}")
        gaps[14].append(f"s_add_u32 m0, s{sM}, 8192")
        gaps[15].append(f"buffer_load_dwordx4 v{vW}, s[{SRD_U}:{SRD_U+3}], s{sWOFF} offen lds {tag}")
        gaps[18].append(f"s_add_u32 m0, s{sM}, {8192+1024}")
        gaps[19].append(f"buffer_load_dwordx4 v{vW}, s[{SRD_U}:{SRD_U+3}], s{sWOFF2} offen lds {tag}")
        gaps[22].append(f"s_add_u32 s{sWOFF}, s{sWOFF}, {32*PITCH}")
        gaps[23].append(f"s_add_u32 s{sSLOT}, s{sSLOT}, 16384")
        gaps[26].append(f"s_and_b32 s{sSLOT}, s{sSLOT}, 0x1ffff")
    if s + DB < NS:
        b2 = (s + DB) % 4
        for tb in range(4):
            gaps[27 + 6*tb].append(f"buffer_load_dwordx4 {ar(BR + 16*b2 + 4*tb, 4)}, v{vB+tb}, s[{SRD_H}:{SRD_H+3}], s{sBOFF} offen{LDG} ; @b=B{s+DB}")
        gaps[50].append(f"s_add_u32 s{sBOFF}, s{sBOFF}, 1024")
    return mfm, gaps

def epilogue(par):
    a = Asm()
    def hh(i, tb, dst):
        g = ACC + 16*(2*i) + 4*tb; u = ACC + 16*(2*i + 1) + 4*tb
        for r in range(4): a(f"v_exp_f32 v{g+r}, -v{g+r}")
        for r in range(4): a(f"v_add_f32 v{g+r}, 1.0, v{g+r}")
        for r in range(4): a(f"v_rcp_f32 v{g+r}, v{g+r}")
        for r in range(4): a(f"v_mul_f32 v{g+r}, v{u+r}, v{g+r}")
        a(f"v_cvt_pk_bf16_f32 v{dst}, v{g}, v{g+1}"); a(f"v_cvt_pk_bf16_f32 v{dst+1}, v{g+2}, v{g+3}")
    groups = [(0, 1), (2, 3), (4, 5), (6,)] if par == 0 else [(0,), (1, 2), (3, 4), (5, 6)]
    n = 0
    for tb in range(4):
        for gi, grp in enumerate(groups):
            T0 = TMP + 4*(n % 4); n += 1
            if len(grp) == 2:
                hh(grp[0], tb, T0); hh(grp[1], tb, T0 + 2)
                a(f"buffer_store_dwordx4 {vr(T0, 4)}, v{vLANE16}, s[{SRD_O}:{SRD_O+3}], s38 offen offset:{gi*1024}{STG}")
            else:
                half = 0 if par == 0 else 1
                hh(grp[0], tb, T0)
                a(f"buffer_store_dwordx2 {vr(T0, 2)}, v{vLANE16}, s[{SRD_O}:{SRD_O+3}], s38 offen offset:{gi*1024 + 8*half}{STG}")
        if tb < 3: a(f"s_add_u32 s38, s38, {112*1024}")
    return a

def gen_gu(name="gu_kernel", stamps=False, fz=None):
    a = Asm() if fz is None else fz.a; lin = [] if fz is None else fz.lin
    if fz is not None: stamps = False
    global LDG, STG
    LDG = LDF if fz else ""; STG = LDF if fz else STF
    def both(x):
        n = len(a.lines); a(x); lin.extend(a.lines[n:])
    if fz is None:
        a(kernel_header(name))
        both("s_cmp_ge_u32 s2, 256"); both(f"s_cbranch_scc1 L_{name}_end")
    if fz is None:
        both(f"s_load_dwordx2 s[{sWS}:{sWS+1}], s[0:1], {KA['ws']}")
        both(f"s_load_dwordx2 s[{sWG}:{sWG+1}], s[0:1], {KA['wg']}")
        both(f"s_load_dwordx2 s[{sWU}:{sWU+1}], s[0:1], {KA['wu']}")
    else:
        fz.ptr(sWG, "wg"); fz.ptr(sWU, "wu")
    if stamps: stamp(both, 0)
    if fz is None:
        both("v_lshrrev_b32 v4, 6, v0"); both("v_and_b32 v0, 63, v0"); both(f"v_readfirstlane_b32 s{sWAVE}, v4")
    else: both(f"s_mov_b32 s{sWAVE}, s{sF_WAVE}")
    both("s_and_b32 s38, s2, 7"); both("s_lshr_b32 s39, s2, 3")
    both("s_and_b32 s40, s38, 1"); both("s_lshl_b32 s40, s40, 2"); both(f"s_lshr_b32 s{sTB}, s39, 3"); both(f"s_add_u32 s{sTB}, s{sTB}, s40")
    both("s_lshr_b32 s40, s38, 1"); both("s_lshl_b32 s40, s40, 3"); both("s_and_b32 s39, s39, 7"); both(f"s_add_u32 s{sCJ}, s40, s39")
    if fz is None: both("s_waitcnt lgkmcnt(0)")
    h = Asm()
    srd(h, SRD_G, sWG, 0, 1024*PITCH); srd(h, SRD_U, sWU, 0, 1024*PITCH)
    srd(h, SRD_H, sWS, WS_H2F, 4 << 20); srd(h, SRD_O, sWS, WS_HHF, 128*112*1024)
    for l in h.lines: both(l)
    both(f"v_lshlrev_b32 v{vLANE16}, 4, v0")
    both("v_lshrrev_b32 v9, 4, v0")
    both(f"s_and_b32 s38, s{sWAVE}, 1"); both("s_lshl_b32 s38, s38, 2")
    both("v_or_b32 v10, s38, v9"); both("v_bfe_u32 v11, v0, 1, 3"); both("v_xor_b32 v10, v10, v11")
    both("v_cmp_eq_u32 vcc, 7, v10")
    both("v_lshlrev_b32 v10, 5, v10")
    both("v_and_b32 v11, 1, v0"); both("v_lshlrev_b32 v11, 4, v11")
    both(f"v_mul_u32_u24 v12, {PITCH}, v9")
    both("v_add3_u32 v10, v10, v11, v12")
    both(f"s_mul_i32 s38, s{sCJ}, 224"); both("v_add_u32 v10, s38, v10")
    both("v_mov_b32 v11, 0x40000000")
    both(f"v_cndmask_b32 v{vW}, v10, v11, vcc")
    both(f"s_lshl_b32 s38, s{sTB}, 4"); both(f"s_lshl_b32 s39, s{sWAVE}, 2"); both("s_add_u32 s38, s38, s39"); both("s_lshl_b32 s38, s38, 15")
    both(f"v_add_u32 v{vB}, s38, v{vLANE16}")
    for tb in range(1, 4): both(f"v_add_u32 v{vB+tb}, 0x8000, v{vB+tb-1}")
    both("v_lshrrev_b32 v17, 4, v0"); both("v_bfe_u32 v18, v0, 2, 2")
    both("v_lshl_add_u32 v19, v17, 3, v18"); both("v_lshlrev_b32 v19, 8, v19")
    both("v_and_b32 v20, 3, v0"); both("v_lshl_add_u32 v19, v20, 3, v19")
    both("v_and_b32 v17, 1, v17"); both("v_lshl_or_b32 v18, v17, 2, v18")
    for i in range(7):
        both(f"v_xor_b32 v20, {i}, v18"); both(f"v_lshl_add_u32 v{vA+i}, v20, 5, v19")
    both(f"s_mul_i32 s{sWOFF}, s{sWAVE}, {8*PITCH}")
    both(f"s_lshl_b32 s{sWM0}, s{sWAVE}, 11")
    both(f"s_mov_b32 s{sSLOT}, 0"); both(f"s_mov_b32 s{sBOFF}, 0")
    vm = VmSim()
    def wpro(st):
        both(f"s_add_u32 s{sM}, s{sWM0}, s{sSLOT}"); both(f"s_add_u32 s{sWOFF2}, s{sWOFF}, {4*PITCH}")
        for (srdr, so, mo) in ((SRD_G, sWOFF, 0), (SRD_G, sWOFF2, 1024), (SRD_U, sWOFF, 8192), (SRD_U, sWOFF2, 9216)):
            both(f"s_add_u32 m0, s{sM}, {mo}"); both("s_nop 0")
            both(f"buffer_load_dwordx4 v{vW}, s[{srdr}:{srdr+3}], s{so} offen lds ; @dma=W{st}"); vm.issue(f"W{st}")
        both(f"s_add_u32 s{sWOFF}, s{sWOFF}, {32*PITCH}"); both(f"s_add_u32 s{sSLOT}, s{sSLOT}, 16384")
    def bpro(sb):
        for tb in range(4):
            both(f"buffer_load_dwordx4 {ar(BR + 16*(sb % 4) + 4*tb, 4)}, v{vB+tb}, s[{SRD_H}:{SRD_H+3}], s{sBOFF} offen{LDG}"); vm.issue(f"B{sb}")
        both(f"s_add_u32 s{sBOFF}, s{sBOFF}, 1024")
    if fz is None:
        for st in range(D):
            wpro(st)
            if st >= 3: bpro(st - 3)
    else:
        both(f"s_add_u32 s38, s{sTB}, {F_S3}"); both(f"s_lshl_b32 s{sF_WAIT}, s38, 7")
        fz.stamp("gu setup")
        fz.handoff(32)
        for st in range(D): wpro(st)
        both("s_barrier")
        fz.stamp("gu go")
        for sb in range(DB): bpro(sb)
    both(f"s_waitcnt vmcnt({vm.wait_for('B0')})")
    both("s_barrier")
    if stamps: stamp(both, 1)
    for at in range(13):
        for hh in range(2):
            i, m = at // 2, at % 2
            both(f"ds_read_b64_tr_b16 {ar(AF + 4*at + 2*hh, 2)}, v{vA+i} offset:{m*8192 + hh*1024} ; @rd=W0")
            if at == 6 and hh == 1: both("s_waitcnt lgkmcnt(6)")
    def qstep(s):
        mfm, gaps = step(s)
        out = Asm(); pre = {}
        if s > 0:
            out(f"s_waitcnt vmcnt({vm.wait_for(f'B{s}')})")
            if s % 2 == 1: out("s_barrier")
        if s < NS - 1:
            pre[0] = ["s_waitcnt lgkmcnt(14)"]; pre[24] = ["s_waitcnt lgkmcnt(14)"]; pre[48] = ["s_waitcnt lgkmcnt(14)"]
        else:
            pre[0] = ["s_waitcnt lgkmcnt(14)"]; pre[24] = ["s_waitcnt lgkmcnt(0)"]
        interleave(out, mfm, gaps, pre)
        for l in out.lines:
            I = parse(l)
            if I is not None and I.kind == "vm": vm.issue((I.tags.get("dma") or I.tags.get("b"))[0])
        return out.lines
    bodies = [sum((qstep(s) for s in range(4*b, 4*b + 4)), []) for b in range(8)]
    strip = lambda L: [re.sub(r"\s*;.*", "", l) for l in L]
    for b in range(2, 6): assert strip(bodies[1]) == strip(bodies[b]), f"loop body {b} not uniform"
    for l in bodies[0]: a(l)
    a(f"s_mov_b32 s{sCNT}, 5")
    a(".p2align 4"); a.label(f"L_{name}_k")
    for l in bodies[1]: a(l)
    a(f"s_sub_u32 s{sCNT}, s{sCNT}, 1"); a(f"s_cmp_lg_u32 s{sCNT}, 0"); a(f"s_cbranch_scc1 L_{name}_k")
    for l in bodies[6] + bodies[7]: a(l)
    for b in bodies: lin += b
    if stamps: stamp(both, 2)
    if fz:
        fz.stamp("gu main done"); both("s_barrier")
    both("s_nop 7")
    both(f"s_lshl_b32 s38, s{sTB}, 4"); both(f"s_lshl_b32 s39, s{sWAVE}, 2"); both("s_add_u32 s38, s38, s39")
    both("s_mul_i32 s38, s38, 112"); both(f"s_mul_i32 s39, s{sCJ}, 7"); both("s_lshr_b32 s39, s39, 1")
    both("s_add_u32 s38, s38, s39"); both("s_lshl_b32 s38, s38, 10")
    a(f"s_bitcmp1_b32 s{sCJ}, 0"); a(f"s_cbranch_scc1 L_{name}_odd")
    e0, e1 = epilogue(0), epilogue(1)
    for l in e0.lines: a(l)
    a(f"s_branch L_{name}_fin")
    a.label(f"L_{name}_odd")
    for l in e1.lines: a(l)
    a.label(f"L_{name}_fin")
    lin2 = lin + e1.lines
    lin += e0.lines
    if fz:
        both(f"s_lshl_b32 s38, s{sTB}, 1"); both(f"s_lshr_b32 s39, s{sCJ}, 4"); both("s_add_u32 s38, s38, s39")
        both(f"s_add_u32 s38, s38, {F_S4}"); both(f"s_lshl_b32 s{sF_SIG}, s38, 7")
        return a, [lin, lin2]
    if stamps:
        a("s_waitcnt vmcnt(0)"); stamp(a, 3); stamp_store(a, 4, sWS, vtmp=16, kidx=5); a("s_waitcnt vmcnt(0)")
    a.label(f"L_{name}_end"); a("s_endpgm")
    return a, [lin, lin2]

if __name__ == "__main__":
    a, lins = gen_gu()
    e = []
    for l in lins: e += check(l, "gu")
    print("errors:", len(e), "instrs:", len(a.lines))
```

```python
from common import *
import k_attn, k_gu, k_g128, k_small

def gen_mega(name="mega_kernel", stamps=False):
    fz = Fuse(stamps)
    a, both = fz.a, fz.both
    _, _, slows = k_attn.gen_attn(name=name, fz=fz)
    fz.stamp("attn epi")
    k_g128.gen_oproj(fz=fz)
    fz.stamp("op epi")
    k_small.gen_ln("ln2p", False, fz=fz)
    fz.stamp("ln2 done")
    _, lins = k_gu.gen_gu("gup", fz=fz)
    fz.stamp("gu epi")
    n0 = len(a.lines)
    k_g128.gen_down(fz=fz)
    if stamps:
        assert a.lines[-1] == "s_endpgm" and a.lines[-2].endswith("_end:")
        tail = a.lines[-2:]; del a.lines[-2:]
        both("s_waitcnt vmcnt(0)"); fz.stamp("end")
        both(f"s_add_u32 s8, s4, {hex(WS_STAMP + 8*65536)}"); both("s_addc_u32 s9, s5, 0"); both("s_mov_b32 s10, 0x100000"); both("s_mov_b32 s11, 0x20000")
        both("s_lshl_b32 s12, s2, 7"); both("v_mov_b32 v200, 0")
        for i in range(fz.nst):
            both(f"v_mov_b32 v202, s{62+i}")
            both(f"buffer_store_dword v202, v200, s[8:11], s12 offen offset:{4*i}"); both("s_waitcnt vmcnt(0)")
        a.lines += tail
    global NAMES
    NAMES = list(fz.names)
    return a, fz.lin, slows, fz.nst

if __name__ == "__main__":
    a, lin, slows, n = gen_mega(stamps=False)
    e = check(lin, "mega")
    print("errors", len(e), "instrs", len(a.lines), "stamps", n)
```

```python
from common import *

def gen_prep(name="prep_kernel", stamps=False):
    a = Asm()
    a(kernel_header(name))
    a("s_cmp_ge_u32 s2, 192"); a(f"s_cbranch_scc1 L_{name}_end")
    a(f"s_load_dwordx2 s[4:5], s[0:1], {KA['ws']}")
    if stamps: stamp(a, 0)
    def fin():
        if stamps:
            a("s_mov_b64 exec, -1"); a("s_waitcnt vmcnt(0)"); stamp(a, 1); stamp_store(a, 2, 4, vtmp=100, kidx=0); a("s_waitcnt vmcnt(0)")
        a("s_endpgm")
    a("v_lshrrev_b32 v4, 6, v0"); a("v_and_b32 v1, 63, v0"); a("v_readfirstlane_b32 s24, v4")
    a("s_waitcnt lgkmcnt(0)")
    srd(a, 36, 4, WS_FLAG, F_LINES*128)
    a("s_lshl_b32 s40, s2, 8"); a("v_lshlrev_b32 v7, 7, v0"); a("v_mov_b32 v9, 0")
    a("v_cmp_gt_u32 vcc, 2, v0"); a("s_and_saveexec_b64 s[42:43], vcc")
    a("buffer_store_dword v9, v7, s[36:39], s40 offen"); a("s_mov_b64 exec, s[42:43]")
    a(f"s_load_dwordx2 s[6:7], s[0:1], {KA['c']}"); a(f"s_load_dwordx2 s[8:9], s[0:1], {KA['wmod']}")
    a("s_mul_hi_u32 s26, s2, 0x5555556")
    a("s_mul_i32 s27, s26, 48"); a("s_sub_u32 s25, s2, s27")
    a("s_waitcnt lgkmcnt(0)")
    srd(a, 12, 6, 0, 2048); srd(a, 16, 8, 0, 1024*12288); srd(a, 20, 4, WS_MODP, 4*6144*4)
    a("s_lshl_b32 s27, s26, 8"); a("s_lshl_b32 s28, s24, 5"); a("s_add_u32 s27, s27, s28")
    a("v_lshrrev_b32 v2, 4, v1"); a("v_lshl_add_u32 v3, v2, 3, s27")
    a("v_lshlrev_b32 v4, 1, v3")
    a("buffer_load_dwordx4 v[8:11], v4, s[12:15], 0 offen")
    a("s_mov_b32 s28, 12288"); a("v_mul_lo_u32 v5, v3, s28")
    a("v_and_b32 v6, 15, v1"); a("v_lshl_add_u32 v5, v6, 4, v5"); a("s_lshl_b32 s28, s25, 8"); a("v_add_u32 v5, s28, v5")
    for i in range(8):
        a(f"buffer_load_dwordx4 v[{32+4*i}:{35+4*i}], v5, s[16:19], 0 offen")
        if i < 7: a("v_add_u32 v5, 12288, v5")
    np2 = 0
    a(f"s_waitcnt vmcnt({8 + np2})")
    for i in range(4):
        a(f"v_lshlrev_b32 v{12+2*i}, 16, v{8+i}"); a(f"v_and_b32 v{13+2*i}, 0xffff0000, v{8+i}")
    a(f"s_mov_b32 s28, {hex(f32bits(-LOG2E))}")
    for i in range(8): a(f"v_mul_f32 v{20+i}, s28, v{12+i}")
    for i in range(8): a(f"v_exp_f32 v{20+i}, v{20+i}")
    for i in range(8): a(f"v_add_f32 v{20+i}, 1.0, v{20+i}")
    for i in range(8): a(f"v_rcp_f32 v{20+i}, v{20+i}")
    for i in range(8): a(f"v_mul_f32 v{12+i}, v{12+i}, v{20+i}")
    for i in range(4): a(f"v_cvt_pk_bf16_f32 v{20+i}, v{12+2*i}, v{13+2*i}")
    for i in range(4):
        a(f"v_lshlrev_b32 v{12+2*i}, 16, v{20+i}"); a(f"v_and_b32 v{13+2*i}, 0xffff0000, v{20+i}")
    for j in range(8): a(f"v_mov_b32 v{64+j}, 0")
    for i in range(8):
        a(f"s_waitcnt vmcnt({7-i+np2})")
        for q in range(4):
            r = 32 + 4*i + q
            a(f"v_lshlrev_b32 v28, 16, v{r}"); a(f"v_and_b32 v29, 0xffff0000, v{r}")
            a(f"v_fmac_f32 v{64+2*q}, v28, v{12+i}"); a(f"v_fmac_f32 v{65+2*q}, v29, v{12+i}")
    a("s_lshl_b32 s28, s24, 2"); a("v_add_u32 v2, s28, v2"); a("v_lshlrev_b32 v2, 9, v2"); a("v_lshl_add_u32 v2, v6, 5, v2")
    a("ds_write_b128 v2, v[64:67]"); a("ds_write_b128 v2, v[68:71] offset:16")
    a("s_waitcnt lgkmcnt(0)"); a("s_barrier")
    a("v_cmp_gt_u32 vcc, 128, v0"); a("s_and_saveexec_b64 s[30:31], vcc"); a(f"s_cbranch_execz L_{name}_end")
    a("v_lshlrev_b32 v2, 2, v0")
    for gi in range(32): a(f"ds_read_b32 v{32+gi}, v2 offset:{gi*512}")
    a("s_waitcnt lgkmcnt(0)")
    for st in (16, 8, 4, 2, 1):
        for i in range(st): a(f"v_add_f32 v{32+i}, v{32+i}, v{32+st+i}")
    a("s_mul_i32 s28, s26, 24576"); a("s_lshl_b32 s29, s25, 9"); a("s_add_u32 s28, s28, s29")
    a("buffer_store_dword v32, v2, s[20:23], s28 offen")
    fin()
    a.label(f"L_{name}_end"); a("s_endpgm")
    return a

def kv_part(a, name, fin):
    a.label(f"L_{name}_kv")
    a("s_sub_u32 s25, s2, 256"); a("s_lshl_b32 s25, s25, 2"); a("s_add_u32 s25, s25, s24")
    a(f"s_load_dwordx2 s[6:7], s[0:1], {KA['k']}"); a(f"s_load_dwordx2 s[8:9], s[0:1], {KA['v']}")
    a("s_waitcnt lgkmcnt(0)")
    a("s_cmp_ge_u32 s25, 256")
    a("s_cselect_b64 s[12:13], s[8:9], s[6:7]"); a("s_mov_b32 s14, 0x200000"); a("s_mov_b32 s15, 0x20000")
    srd(a, 16, 4, WS_KV, 4 << 20)
    a("s_and_b32 s26, s25, 255"); a("s_lshl_b32 s26, s26, 13")
    a("s_lshl_b32 s29, s25, 13")
    a("v_lshlrev_b32 v3, 4, v1")
    a("s_lshl_b32 s27, s24, 13")
    for i in range(8):
        if i == 4: a("s_add_u32 s28, s26, 4096")
        if i % 4 == 0: a(f"s_add_u32 m0, s27, {i*1024}"); a("s_nop 0")
        a(f"buffer_load_dwordx4 v3, s[12:15], s{26 if i < 4 else 28} offen offset:{(i%4)*1024} lds")
    npf = 0
    a("s_cmp_ge_u32 s25, 256"); a(f"s_cbranch_scc1 L_{name}_v")
    a("v_and_b32 v4, 15, v1"); a("v_lshlrev_b32 v4, 8, v4"); a("v_lshrrev_b32 v5, 4, v1"); a("v_lshl_add_u32 v4, v5, 3, v4"); a("v_add_u32 v4, s27, v4")
    a(f"s_waitcnt vmcnt({npf})")
    for kb in range(2):
        for s_ in range(4):
            r = 8 + 4*(4*kb + s_)
            a(f"ds_read_b64 v[{r}:{r+1}], v4 offset:{kb*4096 + s_*64}"); a(f"ds_read_b64 v[{r+2}:{r+3}], v4 offset:{kb*4096 + s_*64 + 32}")
        a("s_waitcnt lgkmcnt(0)")
    a(f"s_branch L_{name}_st")
    a.label(f"L_{name}_v")
    a("v_lshrrev_b32 v4, 4, v1"); a("v_bfe_u32 v5, v1, 2, 2"); a("v_lshl_add_u32 v4, v4, 2, v5"); a("v_lshlrev_b32 v4, 8, v4")
    a("v_and_b32 v5, 3, v1"); a("v_lshl_add_u32 v4, v5, 3, v4"); a("v_add_u32 v4, s27, v4")
    a(f"s_waitcnt vmcnt({npf})")
    for db in range(8):
        a(f"ds_read_b64_tr_b16 v[{8+4*db}:{9+4*db}], v4 offset:{db*32}")
        a(f"ds_read_b64_tr_b16 v[{10+4*db}:{11+4*db}], v4 offset:{db*32 + 4096}")
        if db == 3: a("s_waitcnt lgkmcnt(0)")
    a("s_waitcnt lgkmcnt(0)")
    a.label(f"L_{name}_st")
    for db in range(8):
        if db == 4: a("s_add_u32 s29, s29, 4096")
        a(f"buffer_store_dwordx4 v[{8+4*db}:{11+4*db}], v3, s[16:19], s29 offen offset:{(db%4)*1024}")
    fin()


def gen_ln(name, first, stamps=False, fz=None):
    sc = LOG2E / (128.0 ** 0.5) if first else LOG2E
    ish, isc = (0, 1) if first else (3, 4)
    if fz is None:
        a = Asm()
        a(kernel_header(name))
        a(f"s_cmp_ge_u32 s2, {384 if first else 256}"); a(f"s_cbranch_scc1 L_{name}_end")
    else:
        a = fz.both; stamps = False
    LB = 131072 if fz else 0
    RB = 12288
    ldf = LDF if fz else ""; stf = LDF if fz else STF
    if fz is None:
        a(f"s_load_dwordx2 s[4:5], s[0:1], {KA['ws']}")
        a(f"s_load_dwordx2 s[6:7], s[0:1], {KA['x']}")
    else: fz.ptr(6, "x")
    if stamps: stamp(a, 0)
    if fz is None:
        a("v_lshrrev_b32 v4, 6, v0"); a("v_and_b32 v1, 63, v0"); a("v_readfirstlane_b32 s24, v4")
        a("s_waitcnt lgkmcnt(0)")
    else:
        a(f"s_mov_b32 s24, s{sF_WAVE}"); a("v_mov_b32 v1, v0")
    if first:
        a("s_cmp_ge_u32 s2, 256"); a(f"s_cbranch_scc1 L_{name}_kv")
    srd(a, 8, 6, 0, 4 << 20)
    if not first:
        srd(a, 28, 4, WS_OP, 8 << 20); srd(a, 32, 4, WS_X2, 4 << 20)
        if fz is None:
            srd(a, 36, 4, WS_FLAG, 256*128)
            a("s_lshl_b32 s26, s2, 7"); a("v_mov_b32 v7, 0"); a("v_cmp_eq_u32 vcc, 0, v0"); a("s_and_saveexec_b64 s[40:41], vcc")
            a("buffer_store_dword v7, v7, s[36:39], s26 offen"); a("s_mov_b64 exec, s[40:41]")
    srd(a, 12, 4, WS_H1F if first else WS_H2F, 4 << 20)
    if first: srd(a, 16, 4, WS_MODP, 4*6144*4)
    else: srd(a, 16, 4, WS_MOD, 6144*4)
    srd(a, 20, 4, WS_MOD, 6144*4)
    if fz is None:
        a("s_lshl_b32 s25, s2, 3")
    else:
        a("s_and_b32 s40, s2, 7"); a("s_lshr_b32 s41, s2, 3")
        a("s_lshr_b32 s42, s40, 1"); a("s_lshl_b32 s42, s42, 2"); a("s_lshr_b32 s43, s41, 3"); a("s_add_u32 s42, s42, s43")
        a("s_and_b32 s41, s41, 7"); a("s_lshl_b32 s41, s41, 1"); a("s_and_b32 s40, s40, 1"); a("s_add_u32 s41, s41, s40")
        a("s_lshl_b32 s25, s42, 7"); a("s_lshl_b32 s41, s41, 3"); a("s_add_u32 s25, s25, s41")
        a(f"s_add_u32 s43, s42, {F_S2}"); a(f"s_lshl_b32 s{sF_WAIT}, s43, 7")
    a("v_and_b32 v2, 7, v1"); a("v_add_u32 v2, s25, v2")
    a("v_lshrrev_b32 v3, 3, v1")
    a("v_lshlrev_b32 v5, 11, v2"); a("v_lshl_add_u32 v5, v3, 4, v5"); a("s_lshl_b32 s26, s24, 9"); a("v_add_u32 v5, s26, v5")
    for i in range(4): a(f"buffer_load_dwordx4 v[{32+4*i}:{35+4*i}], v5, s[8:11], 0 offen offset:{i*128}")
    def partial_loads():
        a(f"s_mov_b32 s26, {4 << 20}")
        for i in range(4): a(f"buffer_load_dwordx4 v[{132+4*i}:{135+4*i}], v5, s[28:31], 0 offen offset:{i*128}{ldf}")
        for i in range(4): a(f"buffer_load_dwordx4 v[{148+4*i}:{151+4*i}], v5, s[28:31], s26 offen offset:{i*128}{ldf}")
    if not first and fz is None: partial_loads()
    if fz is None: a("v_lshlrev_b32 v6, 4, v0")
    else:
        a("s_lshl_b32 s26, s24, 10"); a("v_lshlrev_b32 v6, 4, v0"); a("v_add_u32 v6, s26, v6")
    np_ = 4 if first else 1
    for p in range(np_):
        a(f"s_mov_b32 s26, {p*24576 + ish*4096}"); a(f"s_mov_b32 s27, {p*24576 + isc*4096}")
        a(f"buffer_load_dwordx4 v[{64+8*p}:{67+8*p}], v6, s[16:19], s26 offen")
        a(f"buffer_load_dwordx4 v[{68+8*p}:{71+8*p}], v6, s[16:19], s27 offen")
    if first and PREFETCH and PF_WQ_LN1:
        a(f"s_load_dwordx2 s[28:29], s[0:1], {KA['wq']}"); a("s_waitcnt lgkmcnt(0)")
        srd(a, 28, 28, 0, 8 << 20)
        a("s_lshl_b32 s32, s2, 2"); a("s_add_u32 s32, s32, s24"); a("s_lshl_b32 s32, s32, 13")
        a("v_lshlrev_b32 v7, 7, v1")
        a("buffer_load_dword v15, v7, s[28:31], s32 offen")
    npf = 1 if (first and PREFETCH and PF_WQ_LN1) else 0
    if not first:
        a(f"s_mov_b32 s26, {2*4096}")
        a("buffer_load_dwordx4 v[76:79], v6, s[16:19], s26 offen")
    if first:
        a("s_cmp_ge_u32 s2, 4"); a(f"s_cbranch_scc1 L_{name}_nofin")
        a("s_add_u32 s28, s2, 2"); a("s_lshl_b32 s28, s28, 12")
        for p in range(4):
            a(f"s_add_u32 s26, s28, {p*24576}")
            a(f"buffer_load_dwordx4 v[{100+4*p}:{103+4*p}], v6, s[16:19], s26 offen")
        a("s_waitcnt vmcnt(0)")
        for i in range(4):
            a(f"v_add_f32 v{100+i}, v{100+i}, v{104+i}"); a(f"v_add_f32 v{108+i}, v{108+i}, v{112+i}"); a(f"v_add_f32 v{100+i}, v{100+i}, v{108+i}")
        a("v_cvt_pk_bf16_f32 v104, v100, v101"); a("v_cvt_pk_bf16_f32 v105, v102, v103")
        a("v_lshlrev_b32 v100, 16, v104"); a("v_and_b32 v101, 0xffff0000, v104"); a("v_lshlrev_b32 v102, 16, v105"); a("v_and_b32 v103, 0xffff0000, v105")
        a("buffer_store_dwordx4 v[100:103], v6, s[20:23], s28 offen")
        a.label(f"L_{name}_nofin")
    a("v_lshlrev_b32 v13, 5, v3"); a("s_lshl_b32 s26, s24, 10"); a("v_add_u32 v13, s26, v13")
    if LB: a(f"v_add_u32 v13, {LB}, v13")
    a("v_and_b32 v14, 7, v1"); a("v_lshlrev_b32 v14, 2, v14"); a(f"v_add_u32 v14, {LB + RB}, v14")
    a("s_lshl_b32 s26, s24, 5"); a("v_add_u32 v15, s26, v14") if not npf else a("v_add_u32 v20, s26, v14")
    vRW = 15 if not npf else 20
    a("v_lshrrev_b32 v12, 4, v2"); a("v_lshlrev_b32 v12, 15, v12"); a("s_lshl_b32 s26, s24, 13"); a("v_add_u32 v12, s26, v12")
    a("v_lshrrev_b32 v16, 2, v3"); a("v_lshl_add_u32 v12, v16, 10, v12"); a("v_and_b32 v16, 3, v3"); a("v_lshl_add_u32 v12, v16, 8, v12")
    a("v_and_b32 v16, 15, v2"); a("v_lshl_add_u32 v12, v16, 4, v12")
    a(f"s_waitcnt vmcnt({npf})")
    if first:
        for i in range(8):
            a(f"v_add_f32 v{64+i}, v{64+i}, v{72+i}"); a(f"v_add_f32 v{80+i}, v{80+i}, v{88+i}"); a(f"v_add_f32 v{64+i}, v{64+i}, v{80+i}")
        for i in range(4): a(f"v_cvt_pk_bf16_f32 v{72+i}, v{64+2*i}, v{65+2*i}")
        for i in range(4):
            a(f"v_lshlrev_b32 v{64+2*i}, 16, v{72+i}"); a(f"v_and_b32 v{65+2*i}, 0xffff0000, v{72+i}")
    for i in range(4): a(f"v_add_f32 v{68+i}, 1.0, v{68+i}")
    a("v_cvt_pk_bf16_f32 v72, v68, v69"); a("v_cvt_pk_bf16_f32 v73, v70, v71")
    a("v_lshlrev_b32 v68, 16, v72"); a("v_and_b32 v69, 0xffff0000, v72"); a("v_lshlrev_b32 v70, 16, v73"); a("v_and_b32 v71, 0xffff0000, v73")
    a(f"s_mov_b32 s26, {hex(f32bits(sc))}")
    for i in range(8): a(f"v_mul_f32 v{64+i}, s26, v{64+i}")
    if LB: a(f"v_add_u32 v6, {LB}, v6")
    if not first: a("ds_write_b128 v6, v[76:79] offset:8192")
    a("ds_write_b128 v6, v[64:67]"); a("ds_write_b128 v6, v[68:71] offset:4096")
    for i in range(16):
        a(f"v_lshlrev_b32 v{100+2*i}, 16, v{32+i}"); a(f"v_and_b32 v{101+2*i}, 0xffff0000, v{32+i}")
    if not first:
        a("s_waitcnt lgkmcnt(0)")
        if fz:
            fz.stamp("ln2 pre"); fz.handoff(16); a("s_barrier"); fz.stamp("ln2 go")
            partial_loads()
        else:
            a("s_barrier")
        for i in range(4):
            a(f"ds_read_b128 v[{64+8*(i%2)}:{67+8*(i%2)}], v13 offset:{8192+i*256}"); a(f"ds_read_b128 v[{68+8*(i%2)}:{71+8*(i%2)}], v13 offset:{8192+i*256+16}")
            G = 64 + 8*(i % 2)
            if i == 0 and fz: a("s_waitcnt vmcnt(0)")
            for j in range(4):
                p0, p1 = 132+4*i+j, 148+4*i+j
                X0, X1 = 100 + 8*i + 2*j, 101 + 8*i + 2*j
                a(f"v_lshlrev_b32 v16, 16, v{p0}"); a(f"v_and_b32 v17, 0xffff0000, v{p0}")
                a(f"v_lshlrev_b32 v18, 16, v{p1}"); a(f"v_and_b32 v19, 0xffff0000, v{p1}")
                a("v_add_f32 v16, v16, v18"); a("v_add_f32 v17, v17, v19")
                if j == 0: a("s_waitcnt lgkmcnt(0)")
                a(f"v_fmac_f32 v{X0}, v16, v{G+2*j}"); a(f"v_fmac_f32 v{X1}, v17, v{G+2*j+1}")
                a(f"v_cvt_pk_bf16_f32 v{32+4*i+j}, v{X0}, v{X1}")
                a(f"v_lshlrev_b32 v{X0}, 16, v{32+4*i+j}"); a(f"v_and_b32 v{X1}, 0xffff0000, v{32+4*i+j}")
            a(f"buffer_store_dwordx4 v[{32+4*i}:{35+4*i}], v5, s[32:35], 0 offen offset:{i*128}{stf}")
    def rowreduce(r, t, slot):
        a("s_nop 1"); a(f"v_add_f32_dpp v{r}, v{r}, v{r} row_ror:8 row_mask:0xf bank_mask:0xf")
        for swp in ("v_permlane16_swap_b32", "v_permlane32_swap_b32"):
            a(f"v_mov_b32 v{t}, v{r}"); a("s_nop 1"); a(f"{swp} v{r}, v{t}"); a(f"v_add_f32 v{r}, v{r}, v{t}")
        a(f"ds_write_b32 v{vRW}, v{r} offset:{slot*128}")
        a("s_waitcnt lgkmcnt(0)"); a("s_barrier")
        for w_ in range(4): a(f"ds_read_b32 v{22+w_}, v14 offset:{slot*128 + w_*32}")
        a("s_waitcnt lgkmcnt(0)")
        a("v_add_f32 v22, v22, v23"); a("v_add_f32 v24, v24, v25"); a(f"v_add_f32 v{r}, v22, v24")
    for k in range(4): a(f"v_add_f32 v{8+k}, v{100+8*k}, v{101+8*k}")
    for i in range(2, 8):
        for k in range(4): a(f"v_add_f32 v{8+k}, v{8+k}, v{100+8*k+i}")
    a("v_add_f32 v8, v8, v9"); a("v_add_f32 v10, v10, v11"); a("v_add_f32 v8, v8, v10")
    rowreduce(8, 9, 0)
    a(f"v_mul_f32 v8, {hex(f32bits(1.0/1024))}, v8")
    for i in range(32): a(f"v_sub_f32 v{100+i}, v{100+i}, v8")
    for k in range(4): a(f"v_mul_f32 v{26+k}, v{100+8*k}, v{100+8*k}")
    for i in range(1, 8):
        for k in range(4): a(f"v_fmac_f32 v{26+k}, v{100+8*k+i}, v{100+8*k+i}")
    a("v_add_f32 v26, v26, v27"); a("v_add_f32 v28, v28, v29"); a("v_add_f32 v10, v26, v28")
    rowreduce(10, 9, 1)
    a(f"v_mov_b32 v11, {hex(f32bits(1e-5))}"); a(f"v_fmac_f32 v11, {hex(f32bits(1.0/1024))}, v10")
    a("v_rsq_f32 v11, v11")
    for i in range(4):
        a(f"ds_read_b128 v[64:67], v13 offset:{i*256}"); a(f"ds_read_b128 v[68:71], v13 offset:{i*256+16}")
        a(f"ds_read_b128 v[72:75], v13 offset:{4096+i*256}"); a(f"ds_read_b128 v[76:79], v13 offset:{4096+i*256+16}")
        for j in range(8): a(f"v_mul_f32 v{100+8*i+j}, v{100+8*i+j}, v11")
        a("s_waitcnt lgkmcnt(0)")
        for j in range(8): a(f"v_fma_f32 v{100+8*i+j}, v{100+8*i+j}, v{72+j}, v{64+j}")
        for j in range(4): a(f"v_cvt_pk_bf16_f32 v{80+4*i+j}, v{100+8*i+2*j}, v{101+8*i+2*j}")
        a(f"s_mov_b32 s26, {i*2048}")
        a(f"buffer_store_dwordx4 v[{80+4*i}:{83+4*i}], v12, s[12:15], s26 offen{stf}")
    if fz:
        a("s_lshr_b32 s43, s42, 1"); a(f"s_add_u32 s43, s43, {F_S3}"); a(f"s_lshl_b32 s{sF_SIG}, s43, 7")
        return None
    if stamps:
        a("s_waitcnt vmcnt(0)"); stamp(a, 1); stamp_store(a, 2, 4, vtmp=100, kidx=(1 if first else 4)); a("s_waitcnt vmcnt(0)")
    if first:
        a("s_endpgm")
        def fin():
            if stamps:
                a("s_waitcnt vmcnt(0)"); stamp(a, 1); stamp_store(a, 2, 4, vtmp=100, kidx=7); a("s_waitcnt vmcnt(0)")
            a("s_endpgm")
        kv_part(a, name, fin)
    a.label(f"L_{name}_end"); a("s_endpgm")
    return a

if __name__ == "__main__":
    for nm, k in (("prep", gen_prep()), ("ln1", gen_ln("ln1_kernel", True)), ("ln2", gen_ln("ln2_kernel", False))):
        e = check(k.lines, nm, lds_model=False)
        print(nm, "errors:", len(e), "instrs:", len(k.lines))
```

```python
import sys
from common import *
import os
import build as B, k_attn, k_gu, k_sk, k_small, k_g128, k_mega
MEGA = os.environ.get('MEGA', '1') == '1'
G128 = os.environ.get('G128', '1') == '1'

def kernels(stamps=False):
    errs = []
    prep = k_small.gen_prep(stamps=stamps); ln1 = k_small.gen_ln("ln1_kernel", True, stamps); ln2 = k_small.gen_ln("ln2_kernel", False, stamps)
    for k in (prep, ln1, ln2): errs += check(k.lines, "small", lds_model=False)
    if MEGA:
        mg, lin, slows, nst = k_mega.gen_mega(stamps=stamps)
        errs += check(lin, "mega")
        for s in slows: errs += check(s, "slow")
        assert not errs, errs[:5]
        return [
            dict(name="prep_kernel", asm=prep, grid=192, block=512, lds=16384, vgprs=128, accum=128),
            dict(name="ln1_kernel", asm=ln1, grid=384, block=256, lds=32768, vgprs=136, accum=136),
            dict(name="mega_kernel", asm=mg, grid=256, block=256, lds=131072 + 12288 + 256, vgprs=512, accum=256),
        ]
    at, lin, slows = k_attn.gen_attn(stamps=stamps)
    errs += check(lin, "attn")
    for s in slows: errs += check(s, "slow")
    gu, lins = k_gu.gen_gu(stamps=stamps)
    for l in lins: errs += check(l, "gu")
    op, lins = (k_g128 if G128 else k_sk).gen_oproj(stamps=stamps)
    for l in lins: errs += check(l, "oproj")
    dn, lins = (k_g128 if G128 else k_sk).gen_down(stamps=stamps)
    for l in lins: errs += check(l, "down")
    assert not errs, errs[:5]
    return [
        dict(name="prep_kernel", asm=prep, grid=192, block=512, lds=16384, vgprs=128, accum=128),
        dict(name="ln1_kernel", asm=ln1, grid=384, block=256, lds=32768, vgprs=136, accum=136),
        dict(name="attn_kernel", asm=at, grid=256, block=256, lds=131072, vgprs=512, accum=256),
        dict(name="oproj_kernel", asm=op, grid=256, block=256, lds=131072, vgprs=512, accum=256),
        dict(name="ln2_kernel", asm=ln2, grid=256, block=256, lds=12288 + 256, vgprs=168, accum=168),
        dict(name="gu_kernel", asm=gu, grid=256, block=256, lds=131072, vgprs=512, accum=256),
        dict(name="down_kernel", asm=dn, grid=256, block=256, lds=131072, vgprs=512, accum=256),
    ]

if __name__ == "__main__":
    out = sys.argv[1] if len(sys.argv) > 1 else f"cdna_kernels/{NAME}.s"
    txt = B.assemble(kernels())
    open(out, "w").write(txt)
    print("wrote", out, len(txt), "bytes")
```
